```python
import torch

def _softmax(x, axis=-1):
    return torch.softmax(x, dim=axis)

def _gelu(x):
    return torch.nn.functional.gelu(x, approximate='tanh')

def _silu(x):
    return torch.nn.functional.silu(x)

def _sigmoid(x):
    return torch.sigmoid(x)

def _layernorm(x, axis=-1, eps=1e-05):
    m = x.mean(dim=axis, keepdim=True)
    v = x.var(dim=axis, keepdim=True, unbiased=False)
    return (x - m) / torch.sqrt(v + eps)

def _scatter_add(tgt, idx, src, axis=0):
    return tgt.clone().index_add_(axis, idx, src)

def _segment_sum(src, seg, n):
    out = torch.zeros((n,) + src.shape[1:], dtype=src.dtype)
    return out.index_add_(0, seg, src)

def _pad(x, pw):
    flat = tuple((v for pair in reversed(pw) for v in pair))
    return torch.nn.functional.pad(x, flat)
kernel_name = 'adaLN_cond__softmax_full_mha__swiglu_ffn__prompt'

def setup_inputs():

    _w = lambda a: (lambda t: t.to(torch.bfloat16) if t.is_floating_point() else t)(torch.as_tensor(a))

    def _A_setup():
        B, S, D = (1, 2048, 512)
        return {'x': _w((lambda *s: torch.randn(*s, dtype=torch.bfloat16) * 0.05)(B, S, D)), 'wqkv': _w((lambda *s: torch.randn(*s, dtype=torch.bfloat16) * 0.05)(D, 3 * D)), 'wo': _w((lambda *s: torch.randn(*s, dtype=torch.bfloat16) * 0.05)(D, D))}
    _A_in = _A_setup()

    def _B_setup():
        B, S, D, F = (1, 2048, 512, 1792)
        return {'x': _w((lambda *s: torch.randn(*s, dtype=torch.bfloat16) * 0.05)(B, S, D)), 'w_gate': _w((lambda *s: torch.randn(*s, dtype=torch.bfloat16) * 0.05)(D, F)), 'w_up': _w((lambda *s: torch.randn(*s, dtype=torch.bfloat16) * 0.05)(D, F)), 'w_down': _w((lambda *s: torch.randn(*s, dtype=torch.bfloat16) * 0.05)(F, D))}
    _B_in = _B_setup()
    return {'A_x': _A_in['x'], 'A_wqkv': _A_in['wqkv'], 'A_wo': _A_in['wo'], 'B_x': _B_in['x'], 'B_w_gate': _B_in['w_gate'], 'B_w_up': _B_in['w_up'], 'B_w_down': _B_in['w_down'], 'c': _w((lambda *s: torch.randn(*s, dtype=torch.bfloat16) * 0.1)(1, 512) * 8.0), 'w_mod': _w((lambda *s: torch.randn(*s, dtype=torch.bfloat16) * 0.1)(512, 6 * 512) * 512 ** (-0.5) * 8.0)}

def reference(A_x, A_wqkv, A_wo, B_x, B_w_gate, B_w_up, B_w_down, c, w_mod):

    def _A_ref(x, wqkv, wo):
        B, S, D = x.shape
        H = 32
        Dh = D // H
        qkv = (lambda x, *d: x.permute(*d))((x @ wqkv).reshape(B, S, 3, H, Dh), 2, 0, 3, 1, 4)
        q, k, v = (qkv[0], qkv[1], qkv[2])
        scale = Dh ** (-0.5)
        scores = torch.einsum('bhqd,bhkd->bhqk', q, k) * scale
        p = _softmax(scores, axis=-1)
        o = torch.einsum('bhqk,bhkd->bhqd', p, v)
        return (lambda x, *d: x.permute(*d))(o, 0, 2, 1, 3).reshape(B, S, D) @ wo

    def _B_ref(x, w_gate, w_up, w_down):
        g = _silu(x @ w_gate)
        u = x @ w_up
        return g * u @ w_down
    x = A_x
    mod = (_silu(c) @ w_mod).reshape(c.shape[0], 6, 1, -1)
    sa, ca, ga, sb, cb, gb = (mod[:, 0].clone(), mod[:, 1].clone(), mod[:, 2].clone(), mod[:, 3].clone(), mod[:, 4].clone(), mod[:, 5].clone())
    h = _layernorm(x, axis=-1) * (1 + ca) + sa
    x = x + ga * _A_ref(h, A_wqkv, A_wo)
    h = _layernorm(x, axis=-1) * (1 + cb) + sb
    x = x + gb * _B_ref(h, B_w_gate, B_w_up, B_w_down)
    return x
```

```python
import re

TRANS = ("v_exp_f32", "v_log_f32", "v_rcp_f32", "v_rsq_f32", "v_sqrt_f32", "v_sin_f32", "v_cos_f32",
         "v_exp_f16", "v_rcp_iflag_f32")

def _regs(tok):
    tok = tok.strip()
    tok = tok.lstrip('-')
    m = re.match(r'^abs\((.*)\)$', tok)
    if m: tok = m.group(1)
    m = re.match(r'^\|(.*)\|$', tok)
    if m: tok = m.group(1)
    m = re.match(r'^([vsa])(\d+)$', tok)
    if m: return [(m.group(1), int(m.group(2)))]
    m = re.match(r'^([vsa])\[(\d+):(\d+)\]$', tok)
    if m: return [(m.group(1), i) for i in range(int(m.group(2)), int(m.group(3)) + 1)]
    if tok == 'vcc': return [('s', 106), ('s', 107)]
    if tok == 'exec': return [('s', 126), ('s', 127)]
    if tok == 'm0': return [('s', 124)]
    return []

class Ins:
    __slots__ = ("text", "op", "dst", "src", "kind", "passes", "slots", "srcC", "dpp", "lds", "wide_store", "sdata")
    def __init__(self, text):
        self.text = text
        t = text.split(';')[0].strip()
        self.dst = []; self.src = []; self.kind = 'other'; self.passes = 0; self.slots = 1
        self.srcC = []; self.dpp = False; self.lds = False; self.wide_store = False; self.sdata = []
        if not t or t.endswith(':') or t.startswith('.'):
            self.op = ''; self.kind = 'label'; self.slots = 0
            return
        parts = t.split(None, 1)
        op = parts[0]; self.op = op
        rest = parts[1] if len(parts) > 1 else ''
        ops = []; cur = ''; depth = 0
        for ch in rest:
            if ch in '[(': depth += 1
            if ch in '])': depth -= 1
            if ch == ',' and depth == 0:
                ops.append(cur.strip()); cur = ''
            else: cur += ch
        if cur.strip(): ops.append(cur.strip())
        mods = ''
        if ops:
            sp = ops[-1].split(None, 1)
            if len(sp) > 1 and not sp[0].endswith('('):
                ops[-1] = sp[0]; mods = sp[1]
        R = [_regs(o) for o in ops]
        flat = lambda L: [x for l in L for x in l]
        if op == 's_nop':
            self.kind = 'nop'; self.slots = int(ops[0], 0) + 1
        elif op.startswith('v_mfma'):
            self.kind = 'mfma'
            self.passes = 8 if '32x32' in op else 4
            self.dst = R[0]; self.src = flat(R[1:3]); self.srcC = R[3]
        elif op.startswith('v_cmp'):
            self.kind = 'valu'; self.dst = R[0]; self.src = flat(R[1:])
            if op.startswith('v_cmpx'): self.dst = self.dst + _regs('exec')
        elif op.startswith('v_readfirstlane') or op.startswith('v_readlane'):
            self.kind = 'valu'; self.dst = R[0]; self.src = flat(R[1:])
        elif op.startswith('v_permlane'):
            self.kind = 'valu'; self.dst = flat(R[:2]); self.src = flat(R[:2])
        elif op.startswith('v_'):
            self.kind = 'trans' if op.replace('_e32', '').replace('_e64', '') in TRANS else 'valu'
            self.dst = R[0]; self.src = flat(R[1:])
            if re.match(r'v_(add|sub|subrev|addc|subb)_co', op):
                self.dst = R[0] + R[1]; self.src = flat(R[2:])
            if op.startswith('v_fmac') or op.startswith('v_dot2c') or op.startswith('v_pk_fmac'):
                self.src = self.src + R[0]
            if op.startswith('v_cndmask') and len(ops) == 3:
                self.src = self.src + _regs('vcc')
            if 'dpp' in op or 'row_' in mods or 'quad_perm' in mods:
                self.dpp = True
                self.src = self.src + R[0]
        elif op.startswith('ds_read') or op.startswith('ds_bpermute') or op.startswith('ds_swizzle') or op.startswith('ds_permute'):
            self.kind = 'ds'; self.dst = R[0]; self.src = flat(R[1:])
        elif op.startswith('ds_'):
            self.kind = 'ds'; self.src = flat(R)
        elif op.startswith('buffer_load'):
            self.kind = 'vmem'
            if re.search(r'\blds\b', mods):
                self.lds = True; self.src = flat(R) + _regs('m0')
            else:
                self.dst = R[0]; self.src = flat(R[1:])
        elif op.startswith('buffer_store') or op.startswith('buffer_atomic'):
            self.kind = 'vmem'; self.src = flat(R); self.sdata = R[0]
            self.wide_store = ('x3' in op or 'x4' in op)
        elif op.startswith('global_load_lds'):
            self.kind = 'vmem'; self.lds = True; self.src = flat(R) + _regs('m0')
        elif op.startswith('global_load'):
            self.kind = 'vmem'; self.dst = R[0]; self.src = flat(R[1:])
        elif op.startswith('global_store') or op.startswith('global_atomic'):
            self.kind = 'vmem'; self.src = flat(R); self.sdata = R[1]
            self.wide_store = ('x3' in op or 'x4' in op)
        elif op.startswith('s_'):
            self.kind = 'salu'
            if op.startswith(('s_cmp', 's_cbranch', 's_branch', 's_waitcnt', 's_barrier', 's_endpgm', 's_setprio', 's_sleep', 's_bitcmp')):
                self.src = flat(R)
            else:
                self.dst = R[0] if R else []; self.src = flat(R[1:])
                if 'saveexec' in op: self.dst = self.dst + _regs('exec')
        else:
            self.kind = 'other'

def required_gap(prev, cur):
    need = 0
    pd = set(prev.dst)
    if prev.kind in ('valu', 'trans'):
        vd = {r for r in pd if r[0] in 'va'}
        sd = {r for r in pd if r[0] == 's'}
        if cur.kind == 'mfma' and vd & (set(cur.src) | set(cur.srcC)): need = max(need, 2)
        if cur.dpp and vd & set(cur.src): need = max(need, 2)
        if cur.op.startswith('v_permlane') and vd & set(cur.src): need = max(need, 2)
        if (cur.op.startswith('v_readfirstlane') or cur.op.startswith('v_readlane')) and vd & set(cur.src): need = max(need, 1)
        if prev.kind == 'trans' and cur.kind in ('valu', 'mfma', 'vmem', 'ds') and vd & (set(cur.src) | set(cur.srcC)): need = max(need, 1)
        if sd:
            if cur.kind == 'vmem' and sd & set(cur.src): need = max(need, 5)
            if cur.kind in ('valu', 'trans') and sd & set(cur.src): need = max(need, 2)
            if (cur.op.startswith('v_readlane') or cur.op.startswith('v_writelane')) and sd & set(cur.src): need = max(need, 4)
            if ('s', 126) in sd:
                if cur.kind == 'mfma': need = max(need, 4)
                if cur.dpp: need = max(need, 5)
                if cur.op.startswith(('v_permlane', 'v_readfirstlane', 'v_readlane')): need = max(need, 4)
            if cur.kind == 'salu' and sd & set(cur.src): need = max(need, 1)
    if prev.kind == 'mfma':
        big = {4: 8, 8: 12}[prev.passes]
        mid = {4: 6, 8: 10}[prev.passes]
        if cur.kind == 'mfma':
            if pd & set(cur.src): need = max(need, big)
            if pd & set(cur.srcC):
                if not (cur.srcC == prev.dst and cur.passes == prev.passes): need = max(need, mid)
            if pd & set(cur.dst) and not (cur.srcC == prev.dst): need = max(need, mid)
        elif cur.kind in ('valu', 'trans', 'vmem', 'ds'):
            if pd & (set(cur.src) | set(cur.dst)): need = max(need, big)
        if cur.kind in ('valu', 'trans') and set(prev.srcC) & set(cur.dst):
            need = max(need, {4: 3, 8: 7}[prev.passes])
    if prev.kind == 'salu':
        if ('s', 124) in pd and cur.lds: need = max(need, 1)
    if prev.kind == 'vmem' and prev.wide_store:
        if set(prev.sdata) & set(cur.dst):
            need = max(need, 2 if cur.kind in ('valu', 'trans', 'mfma') else 1)
    return need

def fix_hazards(lines, carry=None):
    out = []
    hist = list(carry) if carry else []
    for ln in lines:
        cur = Ins(ln)
        if cur.kind == 'label':
            out.append(ln); continue
        dist = 0; need = 0
        for p in reversed(hist):
            g = required_gap(p, cur)
            if g > dist: need = max(need, g - dist)
            dist += p.slots
            if dist > 20: break
        while need > 0:
            k = min(need, 16)
            nl = f"    s_nop {k-1}"
            out.append(nl); hist.append(Ins(nl)); need -= k
        out.append(ln); hist.append(cur)
        if len(hist) > 64: hist = hist[-40:]
    return out

class Asm:
    def __init__(self):
        self.lines = []
        self.vm = []
    def __call__(self, s, tag=None):
        for l in s.strip('\n').split('\n'):
            l = l.strip()
            if not l: continue
            self.lines.append("    " + l)
            op = l.split()[0]
            if op.startswith(('buffer_', 'global_')) and op not in ('buffer_inv', 'buffer_wbl2'):
                self.vm.append(tag)
    def label(self, l):
        self.lines.append(l + ":")
    def comment(self, c):
        self.lines.append("    ; " + c)
    def vm_n(self, tag):
        idx = max(i for i, t in enumerate(self.vm) if t == tag)
        return len(self.vm) - 1 - idx
    def wait_vm(self, tag, extra=""):
        if tag not in self.vm:
            if extra: self("s_waitcnt " + extra)
            return
        n = self.vm_n(tag)
        assert n <= 63
        self(f"s_waitcnt vmcnt({n}) {extra}".strip())
        self.vm = self.vm[len(self.vm) - n:] if n else []
    def loop(self, body_lines):
        f1 = fix_hazards(body_lines)
        carry = [Ins(l) for l in f1 if Ins(l).kind != 'label'][-40:]
        f2 = fix_hazards(body_lines, carry)
        return f2

def kernel_text(name, body_lines, nvgpr, nsgpr=102, accum=None):
    s = [f".globl {name}", ".p2align 8", f".type {name},@function", f"{name}:"]
    s += body_lines
    return "\n".join(s) + "\n"

def kd_text(name, nvgpr, nsgpr=100, accum=None):
    if accum is None: accum = (nvgpr + 3) // 4 * 4
    return f""".p2align 6
.amdhsa_kernel {name}
  .amdhsa_next_free_vgpr {nvgpr}
  .amdhsa_next_free_sgpr {nsgpr}
  .amdhsa_accum_offset {accum}
  .amdhsa_group_segment_fixed_size 0
  .amdhsa_kernarg_size 96
  .amdhsa_user_sgpr_count 2
  .amdhsa_user_sgpr_kernarg_segment_ptr 1
  .amdhsa_system_sgpr_workgroup_id_x 1
.end_amdhsa_kernel
"""
```

```python
import sys, os
sys.path.insert(0, os.path.dirname(os.path.abspath(__file__)))
from asmlib import *

NAME = "adaLN_cond__softmax_full_mha__swiglu_ffn__prompt"

WS_MOD = 0x0
WS_ST1 = 0x4000
WS_ST2 = 0x10000
WS_Q = 0x100000
WS_K = 0x300000
WS_V = 0x500000
WS_O = 0x700000
WS_X1 = 0x900000
WS_ACT = 0xB00000
WS_X1S = 0x1300000
WS_EXT = 0x8000
WS_AB = 0xF000
WS_SIZE = 0x1500000

KA_X, KA_WQKV, KA_WO, KA_BX, KA_WG, KA_WU, KA_WD, KA_C, KA_WMOD, KA_OUT, KA_DBG, KA_WS = [8 * i for i in range(12)]

LOG2E = 0x3fb8aa3b
NLOG2E = 0xbfb8aa3b

def srd(a, d, b, nbytes):
    a(f"s_mov_b32 s{d}, s{b}")
    a(f"s_and_b32 s{d+1}, s{b+1}, 0xffff")
    a(f"s_mov_b32 s{d+2}, {hex(nbytes)}")
    a(f"s_mov_b32 s{d+3}, 0x00020000")

def allreduce_add(a, regs, tmps):
    for ror in (1, 2, 4, 8):
        for r in regs:
            a(f"v_add_f32_dpp v{r}, v{r}, v{r} row_ror:{ror} row_mask:0xf bank_mask:0xf")
    for sw in ("v_permlane16_swap_b32", "v_permlane32_swap_b32"):
        for r, t in zip(regs, tmps):
            a(f"v_mov_b32 v{t}, v{r}")
        for r, t in zip(regs, tmps):
            a(f"{sw} v{r}, v{t}")
        for r, t in zip(regs, tmps):
            a(f"v_add_f32 v{r}, v{r}, v{t}")

def bf16r(a, r):
    a(f"v_cvt_pk_bf16_f32 v{r}, v{r}, v{r}")
    a(f"v_lshlrev_b32 v{r}, 16, v{r}")

def ln_finish(a, means, sumsq, outs):
    for m, q in zip(means, sumsq):
        a(f"v_mul_f32 v{q}, 0x3b000000, v{q}")
    for m, q in zip(means, sumsq):
        a(f"v_cvt_pk_bf16_f32 v{q}, v{q}, v{m}")
    for m, q in zip(means, sumsq):
        a(f"v_and_b32 v{m}, 0xffff0000, v{q}")
        a(f"v_lshlrev_b32 v{q}, 16, v{q}")
    for m, q in zip(means, sumsq):
        a(f"v_add_f32 v{q}, 0x3727c5ac, v{q}")
    for q in sumsq: bf16r(a, q)
    for q in sumsq: a(f"v_sqrt_f32 v{q}, v{q}")
    for q in sumsq: bf16r(a, q)
    for q, o in zip(sumsq, outs): a(f"v_rcp_f32 v{o}, v{q}")
    for m, o in zip(means, outs): a(f"v_mul_f32 v{o+1}, -v{m}, v{o}" if False else f"v_mul_f32_e64 v{o+1}, -v{m}, v{o}")


def ln_finish2(L, m, q, t):
    L.append(f"v_mul_f32 v{q}, 0x3b000000, v{q}")
    L.append(f"v_cvt_pk_bf16_f32 v{q}, v{q}, v{m}")
    L.append(f"v_and_b32 v{m}, 0xffff0000, v{q}")
    L.append(f"v_lshlrev_b32 v{q}, 16, v{q}")
    L.append(f"v_add_f32 v{q}, 0x3727c5ac, v{q}")
    L.append(f"v_cvt_pk_bf16_f32 v{q}, v{q}, v{q}")
    L.append(f"v_lshlrev_b32 v{q}, 16, v{q}")
    L.append(f"v_sqrt_f32 v{q}, v{q}")
    L.append(f"v_cvt_pk_bf16_f32 v{q}, v{q}, v{q}")
    L.append(f"v_lshlrev_b32 v{q}, 16, v{q}")
    L.append(f"v_rcp_f32 v{t}, v{q}")

STAMP = bool(int(os.environ.get("STAMP", "0")))
WS_STAMP = 0x2000000
NMID = 12
def stamp_start(a):
    if STAMP:
        for i in range(NMID): a(f"s_mov_b32 s{66+2*i}, 0")
        a("s_memrealtime s[90:91]")
def stamp_mid(a, i):
    if STAMP:
        a(f"s_memrealtime s[{66+2*i}:{67+2*i}]")
def stamp_cyc(a, i):
    if STAMP:
        a(f"s_memtime s[{66+2*i}:{67+2*i}]")
def stamp_end(a, kidx, ws_base_sgpr, vt):
    if not STAMP: return
    a("s_waitcnt vmcnt(0)")
    a("s_memrealtime s[92:93]")
    a(f"v_lshrrev_b32 v{vt}, 6, v0")
    a(f"s_lshl_b32 s94, s2, 4")
    a(f"s_add_u32 s94, s94, {kidx*1024*16}")
    a(f"v_add_u32 v{vt}, s94, v{vt}")
    a(f"v_lshlrev_b32 v{vt}, 6, v{vt}")
    a(f"v_add_u32 v{vt}, {WS_STAMP}, v{vt}")
    a("s_waitcnt lgkmcnt(0)")
    a(f"v_mov_b32 v{vt+2}, s90")
    a(f"v_mov_b32 v{vt+3}, s92")
    for i in range(NMID): a(f"v_mov_b32 v{vt+4+i}, s{66+2*i}")
    a("s_getreg_b32 s94, hwreg(HW_REG_XCC_ID)")
    a(f"v_mov_b32 v{vt+16}, s94")
    a("s_getreg_b32 s94, hwreg(HW_REG_HW_ID)")
    a(f"v_mov_b32 v{vt+17}, s94")
    a("s_mov_b64 exec, 1")
    for q in range(4):
        a(f"global_store_dwordx4 v{vt}, v[{vt+2+4*q}:{vt+5+4*q}], s[{ws_base_sgpr}:{ws_base_sgpr+1}] offset:{16*q}")
```

```python
import sys, os, importlib
sys.path.insert(0, os.path.dirname(os.path.abspath(__file__)))
from common import *

KERNELS = []

def build(path, kernels=None):
    ks = kernels or KERNELS
    hdr = open(os.path.join(os.path.dirname(os.path.abspath(__file__)), "header.txt")).read()
    out = [hdr.rstrip("\n")]
    for (n, f, g, b, lds) in ks:
        out.append(f"; @launch kernel={n} grid=({g},1,1) block=({b},1,1) lds={lds}")
    out.append('.amdgcn_target "amdgcn-amd-amdhsa--gfx950"')
    out.append(".text")
    kds = []
    done = set()
    for (n, f, g, b, lds) in ks:
        if n in done: continue
        done.add(n)
        lines, nv = f()
        fl = os.environ.get("STFLAG", "")
        if fl:
            lines = [l + " " + fl if l.strip().startswith("buffer_store") else l for l in lines]
        out.append(kernel_text(n, lines, nv))
        kds.append(kd_text(n, nv))
    out.append("CODE_END:")
    out.append("    s_endpgm")
    out.append('.section .rodata,"a"')
    out += kds
    open(path, "w").write("\n".join(out) + "\n")

if __name__ == "__main__":
    for m in ("k1", "k2", "k3", "k4", "k5", "k6"):
        try:
            mod = importlib.import_module("gen_" + m)
        except ModuleNotFoundError:
            continue
        KERNELS.append(mod.KERNEL)
    path = sys.argv[1] if len(sys.argv) > 1 else f"cdna_kernels/{NAME}.s"
    build(path)
```

```python
import sys, os, struct
sys.path.insert(0, os.path.dirname(os.path.abspath(__file__)))
from asmlib import *

NAME = "adaLN_cond__softmax_full_mha__swiglu_ffn__prompt"
def f2h(x): return hex(struct.unpack('<I', struct.pack('<f', x))[0])

WS_MOD = 0x0
WS_ST1 = 0x4000
WS_EXT = 0x8000
WS_AB = 0xF000
WS_ST2 = 0x10000
WS_FLG = 0x60000
WS_Q = 0x100000
WS_K = 0x300000
WS_V = 0x500000
WS_O = 0x700000
WS_X1 = 0x900000
WS_X1S = 0xB00000
WS_ACT = 0xD00000
WS_SIZE = 0x1400000

KA_X, KA_WQKV, KA_WO, KA_BX, KA_WG, KA_WU, KA_WD, KA_C, KA_WMOD, KA_OUT, KA_DBG, KA_WS = [8 * i for i in range(12)]
LOG2E = 0x3fb8aa3b
NLOG2E = 0xbfb8aa3b

S_X, S_WQKV, S_WO, S_WG, S_WU, S_WD, S_WS, S_OUT = 28, 32, 36, 40, 44, 48, 52, 56
S_WAVE = 60
S_WSP = 62
def sr(x): return f"s[{x}:{x+3}]"
def r4(x): return f"v[{x}:{x+3}]"
def r2(x): return f"v[{x}:{x+1}]"
def r16(x): return f"v[{x}:{x+15}]"

def srd(a, d, b, nbytes):
    a(f"s_mov_b32 s{d}, s{b}")
    a(f"s_and_b32 s{d+1}, s{b+1}, 0xffff")
    a(f"s_mov_b32 s{d+2}, {hex(nbytes)}")
    a(f"s_mov_b32 s{d+3}, 0x00020000")

def allreduce_add(a, regs, tmps):
    for ror in (1, 2, 4, 8):
        for r in regs:
            a(f"v_add_f32_dpp v{r}, v{r}, v{r} row_ror:{ror} row_mask:0xf bank_mask:0xf")
    for sw in ("v_permlane16_swap_b32", "v_permlane32_swap_b32"):
        for r, t in zip(regs, tmps): a(f"v_mov_b32 v{t}, v{r}")
        for r, t in zip(regs, tmps): a(f"{sw} v{r}, v{t}")
        for r, t in zip(regs, tmps): a(f"v_add_f32 v{r}, v{r}, v{t}")

def bf16r(a, r):
    a(f"v_cvt_pk_bf16_f32 v{r}, v{r}, v{r}")
    a(f"v_lshlrev_b32 v{r}, 16, v{r}")

def ln_finish(a, means, sumsq, outs):
    for m, q in zip(means, sumsq): a(f"v_mul_f32 v{q}, 0x3b000000, v{q}")
    for m, q in zip(means, sumsq): a(f"v_cvt_pk_bf16_f32 v{q}, v{q}, v{m}")
    for m, q in zip(means, sumsq):
        a(f"v_and_b32 v{m}, 0xffff0000, v{q}")
        a(f"v_lshlrev_b32 v{q}, 16, v{q}")
    for m, q in zip(means, sumsq): a(f"v_add_f32 v{q}, 0x3727c5ac, v{q}")
    for q in sumsq: bf16r(a, q)
    for q in sumsq: a(f"v_sqrt_f32 v{q}, v{q}")
    for q in sumsq: bf16r(a, q)
    for q, o in zip(sumsq, outs): a(f"v_rcp_f32 v{o}, v{q}")
    for m, o in zip(means, outs): a(f"v_mul_f32_e64 v{o+1}, -v{m}, v{o}")

STAMP = bool(int(os.environ.get("STAMP", "0")))
WS_STAMP = 0x2000000
NMID = 12
def stamp_start(a):
    if STAMP:
        for i in range(NMID): a(f"s_mov_b32 s{66+2*i}, 0")
        a("s_memrealtime s[90:91]")
def stamp_mid(a, i):
    if STAMP: a(f"s_memrealtime s[{66+2*i}:{67+2*i}]")
def stamp_end(a, kidx, ws_base_sgpr, vt, wait=True):
    if not STAMP: return
    if wait: a("s_waitcnt vmcnt(0)")
    a("s_memrealtime s[92:93]")
    a(f"v_lshrrev_b32 v{vt}, 6, v0")
    a(f"s_lshl_b32 s94, s2, 4")
    a(f"s_add_u32 s94, s94, {kidx*1024*16}")
    a(f"v_add_u32 v{vt}, s94, v{vt}")
    a(f"v_lshlrev_b32 v{vt}, 6, v{vt}")
    a(f"v_add_u32 v{vt}, {WS_STAMP}, v{vt}")
    a("s_waitcnt lgkmcnt(0)")
    a(f"v_mov_b32 v{vt+2}, s90")
    a(f"v_mov_b32 v{vt+3}, s92")
    for i in range(NMID): a(f"v_mov_b32 v{vt+4+i}, s{66+2*i}")
    a("s_getreg_b32 s94, hwreg(HW_REG_XCC_ID)")
    a(f"v_mov_b32 v{vt+16}, s94")
    a("s_getreg_b32 s94, hwreg(HW_REG_HW_ID)")
    a(f"v_mov_b32 v{vt+17}, s94")
    a("s_mov_b64 exec, 1")
    for q in range(4):
        a(f"global_store_dwordx4 v{vt}, v[{vt+2+4*q}:{vt+5+4*q}], s[{ws_base_sgpr}:{ws_base_sgpr+1}] offset:{16*q}")
    a("s_mov_b64 exec, -1")

def prologue(a, endlabel):
    a("s_cmp_ge_u32 s2, 256")
    a(f"s_cbranch_scc1 {endlabel}")
    stamp_start(a)
    a("s_load_dwordx16 s[4:19], s[0:1], 0")
    a("s_load_dwordx8 s[20:27], s[0:1], 64")
    a("v_and_b32 v1, 63, v0")
    a("v_lshrrev_b32 v2, 6, v0")
    a("s_nop 0")
    a(f"v_readfirstlane_b32 s{S_WAVE}, v2")
    a("s_waitcnt lgkmcnt(0)")
    srd(a, S_X, 4, 2048 * 512 * 2)
    srd(a, S_WQKV, 6, 512 * 1536 * 2)
    srd(a, S_WO, 8, 512 * 512 * 2)
    srd(a, S_WG, 12, 512 * 1792 * 2)
    srd(a, S_WU, 14, 512 * 1792 * 2)
    srd(a, S_WD, 16, 1792 * 512 * 2)
    srd(a, S_OUT, 22, 2048 * 512 * 2)
    srd(a, S_WS, 26, WS_SIZE)
    a(f"s_mov_b64 s[{S_WSP}:{S_WSP+1}], s[26:27]")
```

```python
from common import *
import phases

NMOD = 96
NWG = NMOD + 256
def k1():
    a = Asm()
    a(f"s_cmp_ge_u32 s2, {NWG}")
    a("s_cbranch_scc1 K1_END")
    stamp_start(a)
    a(f"s_load_dwordx4 s[4:7], s[0:1], {KA_X}")
    a(f"s_load_dwordx4 s[8:11], s[0:1], {KA_C}")
    a(f"s_load_dwordx2 s[34:35], s[0:1], {KA_WS}")
    a("s_and_b32 s36, s2, 7")
    a("s_mul_i32 s36, s36, 12")
    a("s_lshr_b32 s37, s2, 3")
    a("s_add_u32 s36, s36, s37")
    a("v_and_b32 v1, 3, v0")
    a("v_lshrrev_b32 v2, 2, v0")
    a("v_lshlrev_b32 v3, 1, v2")
    a("v_mul_u32_u24 v4, 6144, v2")
    a("v_lshl_add_u32 v4, v1, 4, v4")
    a("s_lshl_b32 s3, s36, 6")
    a("v_add_u32 v4, s3, v4")
    a("s_waitcnt lgkmcnt(0)")
    srd(a, 12, 4, 2048 * 512 * 2)
    srd(a, 16, 8, 1024)
    srd(a, 20, 10, 512 * 3072 * 2)
    srd(a, 24, 34, WS_SIZE)
    srd(a, 40, 6, 512 * 1536 * 2)
    a(f"s_cmp_ge_u32 s2, {NMOD}")
    a("s_cbranch_scc1 K1_STATS")
    stamp_mid(a, 0)
    for i in range(8):
        a(f"s_mov_b32 s28, {i*393216}")
        a(f"buffer_load_dwordx4 v[{16+4*i}:{19+4*i}], v4, s[20:23], s28 offen", f"w{i}")
        if i == 0:
            for k in range(8):
                a(f"buffer_load_ushort v{8+k}, v3, s[16:19], 0 offen offset:{128*k}", "c")
    for i in range(8):
        a(f"v_mov_b32 v{48+i}, 0")
    stamp_mid(a, 1)
    a.wait_vm("c")
    stamp_mid(a, 2)
    for i in range(8): a(f"v_lshlrev_b32 v{8+i}, 16, v{8+i}")
    for i in range(8): a(f"v_mul_f32 v{56+i}, {hex(NLOG2E)}, v{8+i}")
    for i in range(8): a(f"v_exp_f32 v{56+i}, v{56+i}")
    for i in range(8): a(f"v_add_f32 v{56+i}, 1.0, v{56+i}")
    for i in range(8): a(f"v_rcp_f32 v{56+i}, v{56+i}")
    for i in range(8): a(f"v_mul_f32 v{8+i}, v{8+i}, v{56+i}")
    for i in range(8): bf16r(a, 8 + i)
    for i in range(8):
        a.wait_vm(f"w{i}")
        if i in (1, 4, 7): stamp_mid(a, 3 + i // 3)
        for d in range(4):
            w = 16 + 4 * i + d
            a(f"v_lshlrev_b32 v{56+2*d}, 16, v{w}")
            a(f"v_and_b32 v{57+2*d}, 0xffff0000, v{w}")
        for d in range(8):
            a(f"v_fmac_f32 v{48+d}, v{8+i}, v{56+d}")
    for ror in (4, 8):
        for d in range(8):
            a(f"v_add_f32_dpp v{48+d}, v{48+d}, v{48+d} row_ror:{ror} row_mask:0xf bank_mask:0xf")
    a("v_lshrrev_b32 v5, 4, v0")
    a("v_lshlrev_b32 v5, 7, v5")
    a("v_lshl_add_u32 v5, v1, 5, v5")
    a("s_mov_b32 s30, 0x000f000f")
    a("s_mov_b32 s31, 0x000f000f")
    a("s_mov_b64 exec, s[30:31]")
    a("ds_write_b128 v5, v[48:51]")
    a("ds_write_b128 v5, v[52:55] offset:16")
    a("s_mov_b64 exec, -1")
    a("s_waitcnt lgkmcnt(0)")
    a("s_barrier")
    stamp_mid(a, 6)
    a("v_cmp_gt_u32 vcc, 32, v0")
    a("s_and_saveexec_b64 s[32:33], vcc")
    a("s_cbranch_execz K1_END")
    a("v_lshlrev_b32 v5, 2, v0")
    for i in range(16):
        a(f"ds_read_b32 v{16+i}, v5 offset:{128*i}")
    a("s_waitcnt lgkmcnt(0)")
    for st in (8, 4, 2, 1):
        for i in range(st):
            a(f"v_add_f32 v{16+i}, v{16+i}, v{16+i+st}")
    bf16r(a, 16)
    a("s_lshr_b32 s28, s36, 4")
    a("s_cmp_eq_u32 s28, 1")
    a("s_cselect_b32 s29, 1, 0")
    a("s_cmp_eq_u32 s28, 4")
    a("s_cselect_b32 s29, 1, s29")
    a("s_cmp_eq_u32 s29, 0")
    a("s_cbranch_scc1 K1_NOADD")
    a("v_add_f32 v16, 1.0, v16")
    bf16r(a, 16)
    a.label("K1_NOADD")
    a("s_lshl_b32 s28, s36, 7")
    a(f"buffer_store_dword v16, v5, s[24:27], s28 offen offset:{WS_MOD}")
    a("s_lshr_b32 s28, s36, 4")
    a("s_lshl_b32 s29, s28, 2")
    a("s_lshr_b32 s28, 0x701723, s29")
    a("s_and_b32 s28, s28, 7")
    a("s_cmp_eq_u32 s28, 7")
    a("s_cbranch_scc1 K1_NOAB")
    a("s_lshl_b32 s28, s28, 10")
    a("s_and_b32 s29, s36, 15")
    a("s_lshl_b32 s29, s29, 6")
    a("s_add_u32 s28, s28, s29")
    a(f"s_add_u32 s28, s28, {WS_AB}")
    a("v_lshlrev_b32 v5, 1, v0")
    a("buffer_store_short_d16_hi v16, v5, s[24:27], s28 offen")
    a.label("K1_NOAB")
    stamp_end(a, 0, 34, 24)
    a("s_endpgm")
    a.label("K1_STATS")
    a.vm = []
    a(f"s_sub_u32 s29, s2, {NMOD}")
    a("s_lshr_b32 s30, s29, 3")
    a("s_bfe_u32 s31, s29, 0x20001")
    a("s_lshl_b32 s31, s31, 5")
    a("s_add_u32 s31, s31, s30")
    a("s_lshl_b32 s28, s31, 14")
    if os.environ.get("CODEPF", "1") == "1":
        a("s_cmp_eq_u32 s30, 0")
        a("s_cbranch_scc0 K1_NOCODE")
        a("s_getpc_b64 s[44:45]")
        a.label("K1_PC")
        a("s_sub_u32 s44, s44, K1_PC-k1_kernel")
        a("s_subb_u32 s45, s45, 0")
        a("v_lshlrev_b32 v6, 7, v0")
        a("v_min_u32 v6, CODE_END-k1_kernel-4, v6")
        a("global_load_dword v68, v6, s[44:45]", "pf")
        a.label("K1_NOCODE")
    a("s_cmp_eq_u32 s29, 16")
    a("s_cbranch_scc0 K1_NOZ")
    for r in range(4): a(f"v_mov_b32 v{8+r}, 0")
    a("v_lshlrev_b32 v6, 4, v0")
    a(f"s_mov_b32 s44, {WS_FLG}")
    a("buffer_store_dwordx4 v[8:11], v6, s[24:27], s44 offen")
    a(f"s_mov_b32 s44, {WS_FLG + 4096}")
    a("buffer_store_dwordx4 v[8:11], v6, s[24:27], s44 offen")
    a("s_nop 1")
    a.label("K1_NOZ")
    G = int(os.environ.get("TLBPF", "16"))
    if G:
        a("s_cmp_eq_u32 s30, 1")
        a("s_cbranch_scc0 K1_NOTLB")
        a(f"s_load_dwordx2 s[46:47], s[0:1], {KA_WO}")
        a(f"s_load_dwordx4 s[48:51], s[0:1], {KA_WG}")
        a(f"s_load_dwordx2 s[52:53], s[0:1], {KA_WD}")
        a(f"s_load_dwordx2 s[54:55], s[0:1], {KA_OUT}")
        a(f"v_lshlrev_b32 v6, {G}, v0")
        for q in range((WS_SIZE + (256 << G) - 1) // (256 << G)):
            a(f"s_mov_b32 s44, {q * (256 << G)}")
            a(f"buffer_load_dword v68, v6, s[24:27], s44 offen")
        a("s_waitcnt lgkmcnt(0)")
        for (b, n) in ((46, 512*512*2), (48, 512*1792*2), (50, 512*1792*2), (52, 1792*512*2), (54, 2048*512*2)):
            srd(a, 56, b, n)
            for q in range((n + (256 << G) - 1) // (256 << G)):
                a(f"s_mov_b32 s44, {q * (256 << G)}")
                a(f"buffer_load_dword v69, v6, s[56:59], s44 offen")
        a.label("K1_NOTLB")
    a("v_lshrrev_b32 v1, 6, v0")
    a("v_and_b32 v2, 63, v0")
    a("v_lshlrev_b32 v3, 12, v1")
    a("v_lshl_add_u32 v3, v2, 4, v3")
    for r in range(4):
        a(f"buffer_load_dwordx4 v[{8+4*r}:{11+4*r}], v3, s[12:15], s28 offen offset:{1024*r}", f"x{r}")
    a("v_mul_u32_u24 v4, 5462, v0")
    a("v_lshrrev_b32 v4, 16, v4")
    a("v_mul_u32_u24 v5, 12, v4")
    a("v_sub_u32 v5, v0, v5")
    a("v_mul_u32_u24 v4, 3072, v4")
    a("v_lshrrev_b32 v6, 2, v5")
    a("v_lshl_add_u32 v4, v6, 10, v4")
    a("v_and_b32 v6, 3, v5")
    a("v_lshl_add_u32 v4, v6, 7, v4")
    a("v_cmp_gt_u32 vcc, 192, v0")
    a("v_mov_b32 v6, 0x7ff00000")
    a("v_cndmask_b32 v4, v6, v4, vcc")
    a("s_mul_i32 s32, s30, 16*3072")
    a("s_and_b32 s33, s29, 1")
    a("s_lshl_b32 s36, s33, 9")
    a("s_add_u32 s32, s32, s36")
    a("buffer_load_dword v7, v4, s[40:43], s32 offen", "pf")
    a("s_cmp_eq_u32 s33, 0")
    a("s_cbranch_scc0 K1_AUXEND")
    for r in range(4):
        a.wait_vm(f"x{r}")
        for d in range(4):
            a(f"v_lshlrev_b32 v{24+8*r+2*d}, 16, v{8+4*r+d}")
            a(f"v_and_b32 v{25+8*r+2*d}, 0xffff0000, v{8+4*r+d}")
        b = 24 + 8 * r
        a(f"v_add_f32 v{56+r}, v{b}, v{b+1}")
        a(f"v_add_f32 v{60+r}, v{b+2}, v{b+3}")
        a(f"v_add_f32 v{56+r}, v{56+r}, v{b+4}")
        a(f"v_add_f32 v{60+r}, v{60+r}, v{b+5}")
        a(f"v_add_f32 v{56+r}, v{56+r}, v{b+6}")
        a(f"v_add_f32 v{60+r}, v{60+r}, v{b+7}")
        a(f"v_add_f32 v{56+r}, v{56+r}, v{60+r}")
    allreduce_add(a, [56, 57, 58, 59], [60, 61, 62, 63])
    for r in range(4):
        a(f"v_mul_f32 v{56+r}, 0x3b000000, v{56+r}")
    for r in range(4):
        b = 24 + 8 * r
        for d in range(8):
            a(f"v_sub_f32 v{b+d}, v{b+d}, v{56+r}")
        a(f"v_mul_f32 v{64+r}, v{b}, v{b}")
        for d in range(1, 8):
            a(f"v_fmac_f32 v{64+r}, v{b+d}, v{b+d}")
    allreduce_add(a, [64, 65, 66, 67], [60, 61, 62, 63])
    ln_finish(a, [56, 57, 58, 59], [64, 65, 66, 67], [(8 + 2 * r) for r in range(4)])
    a("s_lshl_b32 s28, s31, 7")
    a(f"s_add_u32 s28, s28, {WS_ST1}")
    a("v_lshlrev_b32 v3, 5, v1")
    a("s_mov_b64 exec, 1")
    a("buffer_store_dwordx4 v[8:11], v3, s[24:27], s28 offen")
    a("buffer_store_dwordx4 v[12:15], v3, s[24:27], s28 offen offset:16")
    a("s_mov_b64 exec, -1")
    a.label("K1_AUXEND")
    stamp_end(a, 0, 34, 24)
    a.label("K1_END")
    a("s_endpgm")
    return fix_hazards(a.lines), 72

KERNEL = ("k1_kernel", k1, NWG, 256, 2048)
```

```python
from common import *

NV = 168
SC = ""
FUSED = False

def F2(hg): return WS_FLG + hg * 128
F2B, F3B, F4B, F5B, FEB = WS_FLG, WS_FLG + 1024, WS_FLG + 2048, WS_FLG + 4096, WS_FLG + 6144
FLG_BYTES = 8192

_uid = [0]
def uid(p):
    _uid[0] += 1
    return f"{p}_{_uid[0]}"

def poll(c, s_off, n, vt, st=None):
    if not FUSED: return
    _poll(c, s_off, n, vt)
    if st is not None: stamp_mid(c, st)

def _poll(c, s_off, n, vt):
    L = uid("POLL"); E = uid("POLLE")
    c(f"v_lshlrev_b32 v{vt}, 2, v1")
    c(f"v_min_u32 v{vt}, {4*(n-1)}, v{vt}")
    c("s_mov_b32 s95, 0x40000")
    c.label(L)
    c(f"buffer_load_dword v{vt+1}, v{vt}, {sr(S_WS)}, s{s_off} offen sc1")
    c("s_waitcnt vmcnt(0)")
    c(f"v_cmp_eq_u32 vcc, 0, v{vt+1}")
    c("s_sub_u32 s95, s95, 1")
    c("s_cmp_eq_u32 s95, 0")
    c(f"s_cbranch_scc1 {E}")
    c("s_cbranch_vccnz " + L)
    c.label(E)

def signal(c, s_off, vt, st=None):
    if not FUSED: return
    if st is not None: stamp_mid(c, st)
    c(f"v_mov_b32 v{vt}, 0")
    c(f"v_mov_b32 v{vt+1}, 1")
    c("s_mov_b64 exec, 1")
    c(f"buffer_store_dword v{vt+1}, v{vt}, {sr(S_WS)}, s{s_off} offen sc1")
    c("s_mov_b64 exec, -1")

def barriers(c, n):
    if n <= 3:
        for _ in range(n): c("s_barrier")
        return
    L = uid("BAR")
    c(f"s_mov_b32 s96, {n}")
    c.label(L)
    c("s_barrier")
    c("s_sub_u32 s96, s96, 1")
    c("s_cmp_lg_u32 s96, 0")
    c(f"s_cbranch_scc1 {L}")

def finish(c, kidx, endlabel, vt=8):
    if FUSED:
        c(f"s_branch {endlabel}")
    else:
        stamp_end(c, kidx, S_WSP, vt)
        c("s_endpgm")

def p2(a):
    A_STG = 8192; B_BASE = 65536; B_SLOT = 24576; NSB = 4
    XR, AB, TMP, ACC, FR = 8, 52, 68, 80, [104, 124]
    END = "P2_END"
    a("s_and_b32 s25, s2, 1")
    a("s_lshl_b32 s25, s25, 2")
    a("s_bfe_u32 s26, s2, 0x20003")
    a("s_add_u32 s25, s25, s26")
    a("s_bfe_u32 s26, s2, 0x20001")
    a("s_lshl_b32 s26, s26, 3")
    a("s_lshr_b32 s27, s2, 5")
    a("s_add_u32 s26, s26, s27")
    a(f"s_cmp_ge_u32 s{S_WAVE}, 8")
    a("s_cbranch_scc1 P2_LOADER")
    a("v_lshlrev_b32 v42, 4, v1")
    a("s_lshl_b32 s27, s26, 16")
    a(f"s_lshl_b32 s20, s{S_WAVE}, 13")
    a("s_add_u32 s27, s27, s20")
    a("s_add_u32 s20, s27, 4096")
    a("s_lshr_b32 s21, s27, 7")
    a(f"s_add_u32 s21, s21, {WS_ST1}")
    a(f"s_buffer_load_dwordx16 s[4:19], {sr(S_WS)}, s21")
    a(f"s_mov_b32 s22, {WS_AB + 2048}")
    a(f"buffer_load_dwordx4 {r4(FR[0])}, v42, {sr(S_WS)}, s22 offen", "ab")
    a(f"buffer_load_dwordx4 {r4(FR[0]+4)}, v42, {sr(S_WS)}, s22 offen offset:1024", "ab")
    for j in range(8):
        a(f"buffer_load_dwordx4 {r4(XR+4*j)}, v42, {sr(S_X)}, s{27 if j < 4 else 20} offen offset:{1024*(j%4)}", f"x{j}")
    a("s_barrier")
    a("v_lshrrev_b32 v54, 3, v1")
    a("v_lshlrev_b32 v43, 13, v54")
    a("v_and_b32 v55, 7, v1")
    a(f"s_and_b32 s23, s{S_WAVE}, 1")
    a("s_lshl_b32 s22, s23, 2")
    a("v_xor_b32 v55, s22, v55")
    a("v_lshl_add_u32 v43, v55, 4, v43")
    a(f"s_lshl_b32 s22, s{S_WAVE}, 10")
    a("v_add_u32 v43, s22, v43")
    for q in range(1, 4): a(f"v_xor_b32 v{43+q}, {q*16}, v43")
    a("v_and_b32 v54, 15, v1")
    a("v_lshrrev_b32 v55, 4, v1")
    a("v_bfe_u32 v56, v54, 1, 3")
    a("v_xor_b32 v56, v56, v55")
    a("v_lshlrev_b32 v40, 7, v54")
    a("v_lshl_add_u32 v40, v56, 4, v40")
    a("s_lshl_b32 s22, s23, 12")
    a("v_add_u32 v40, s22, v40")
    a("v_xor_b32 v41, 64, v40")
    a("v_bfe_u32 v56, v1, 2, 2")
    a("v_lshl_add_u32 v56, v55, 3, v56")
    a("v_mul_u32_u24 v47, 384, v56")
    a("v_bfe_u32 v57, v1, 3, 2")
    a(f"s_lshr_b32 s24, s{S_WAVE}, 1")
    a("v_xor_b32 v57, s24, v57")
    a("v_lshl_add_u32 v47, v57, 5, v47")
    a("v_and_b32 v58, 3, v1")
    a("v_lshl_add_u32 v47, v58, 3, v47")
    a(f"v_add_u32 v47, {B_BASE}, v47")
    a(f"v_add_u32 v48, {2*B_SLOT}, v47")
    for r in range(ACC, ACC + 24): a(f"v_mov_b32 v{r}, 0")
    a.wait_vm("ab", "lgkmcnt(0)")
    for q in range(8):
        a(f"v_lshlrev_b32 v{AB+2*q}, 16, v{FR[0]+q}")
        a(f"v_and_b32 v{AB+2*q+1}, 0xffff0000, v{FR[0]+q}")
    if not FUSED: stamp_mid(a, 0)
    for j in range(8):
        x = XR + 4 * j
        a.wait_vm(f"x{j}")
        a(f"v_mov_b32 v3, s{5+2*j}")
        for d in range(4):
            a(f"v_lshlrev_b32 v{TMP+2*d}, 16, v{x+d}")
            a(f"v_and_b32 v{TMP+1+2*d}, 0xffff0000, v{x+d}")
        for d in range(8): a(f"v_fma_f32 v{TMP+d}, v{TMP+d}, s{4+2*j}, v3")
        for d in range(8): a(f"v_fma_f32 v{TMP+d}, v{TMP+d}, v{AB+d}, v{AB+8+d}")
        for d in range(4): a(f"v_cvt_pk_bf16_f32 v{x+d}, v{TMP+2*d}, v{TMP+1+2*d}")
        a(f"ds_write_b128 v{43 + (j>>1)}, {r4(x)} offset:{j*128}")
    def read_list(s):
        c, ks = divmod(s, 2)
        F = FR[s & 1]
        sb = c % NSB
        vb = 47 + sb // 2
        ob = (sb % 2) * B_SLOT + ks * 32 * 384
        A = [f"ds_read_b128 {r4(F+4*tt)}, v{40+ks} offset:{c*A_STG + tt*2048}" for tt in range(2)]
        B = []
        for seg in range(3):
            r = F + 8 + seg * 4
            B.append(f"ds_read_b64_tr_b16 v[{r}:{r+1}], v{vb} offset:{ob + seg*128}")
            B.append(f"ds_read_b64_tr_b16 v[{r+2}:{r+3}], v{vb} offset:{ob + seg*128 + 4*384}")
        return [A[0], B[0], B[1], A[1], B[2], B[3], B[4], B[5]]
    def mf_list(s):
        F = FR[s & 1]
        L = []
        for seg in range(3):
            for tt in range(2):
                A = F + tt * 4; B = F + 8 + seg * 4; D = ACC + seg * 8 + tt * 4
                need = max([3, 6, 8][seg], [1, 4][tt])
                if seg < 2: L.append((f"v_mfma_f32_16x16x32_bf16 {r4(D)}, {r4(B)}, {r4(A)}, {r4(D)}", need))
                else: L.append((f"v_mfma_f32_16x16x32_bf16 {r4(D)}, {r4(A)}, {r4(B)}, {r4(D)}", need))
        return L
    a("s_waitcnt lgkmcnt(0)")
    a("s_barrier")
    stamp_mid(a, 1 if not FUSED else 0)
    for l in read_list(0): a(l)
    NR = 8
    for s in range(16):
        c, ks = divmod(s, 2)
        last = s == 15
        R = read_list(s + 1) if not last else []
        done = 0
        if ks == 1 and not last:
            a("s_waitcnt lgkmcnt(0)")
            a("s_barrier")
            done = NR
        issued = 0
        for idx, (txt, need) in enumerate(mf_list(s)):
            if need > done:
                a(f"s_waitcnt lgkmcnt({min(15, NR - need + issued)})")
                done = need
            a(txt)
            tgt = min(len(R), 2 * (idx + 1))
            while issued < tgt:
                a(R[issued]); issued += 1
    stamp_mid(a, 3 if not FUSED else 1)
    a("s_lshl_b32 s20, s25, 2")
    a("s_add_u32 s20, s20, s24")
    a("s_lshl_b32 s20, s20, 16")
    a("s_lshl_b32 s21, s26, 11")
    a("s_add_u32 s20, s20, s21")
    a("s_lshl_b32 s21, s23, 10")
    a("s_add_u32 s20, s20, s21")
    a(f"s_add_u32 s4, s20, {WS_Q}")
    a(f"s_add_u32 s5, s20, {WS_K}")
    a(f"s_add_u32 s6, s20, {WS_V}")
    a("v_and_b32 v54, 15, v1")
    a("v_lshrrev_b32 v55, 4, v1")
    a("v_lshlrev_b32 v56, 4, v54")
    a("v_lshrrev_b32 v58, 1, v55")
    a("v_lshl_add_u32 v56, v58, 9, v56")
    a("v_and_b32 v58, 1, v55")
    a("v_lshl_add_u32 v56, v58, 3, v56")
    a("v_lshlrev_b32 v57, 4, v54")
    a("v_lshl_add_u32 v57, v58, 8, v57")
    a("v_lshrrev_b32 v58, 1, v55")
    a("v_lshl_add_u32 v57, v58, 3, v57")
    qs = f2h(0.25 * 1.4426950408889634)
    for r in range(ACC, ACC + 8): a(f"v_mul_f32 v{r}, {qs}, v{r}")
    for seg in (1, 2, 0):
        for tt in range(2):
            D = ACC + seg * 8 + tt * 4
            P = 8 + (seg * 2 + tt) * 2
            a(f"v_cvt_pk_bf16_f32 v{P}, v{D}, v{D+1}")
            a(f"v_cvt_pk_bf16_f32 v{P+1}, v{D+2}, v{D+3}")
            a(f"buffer_store_dwordx2 v[{P}:{P+1}], v{56 if seg < 2 else 57}, {sr(S_WS)}, s{4+seg} offen offset:{tt*(256 if seg < 2 else 512)} {SC}")
    if FUSED:
        a("s_waitcnt vmcnt(0)")
        a("s_barrier")
    finish(a, 1, END, 120)
    c = a
    c.label("P2_LOADER")
    c.vm = []
    c(f"s_sub_u32 s23, s{S_WAVE}, 8")
    for ii in range(3):
        v = 10 + ii
        c(f"v_add_u32 v4, {64*ii}, v1")
        c("v_mul_u32_u24 v5, 2731, v4")
        c("v_lshrrev_b32 v5, 16, v5")
        c("v_mul_u32_u24 v6, 24, v5")
        c("v_sub_u32 v6, v4, v6")
        c("v_lshrrev_b32 v7, 3, v6")
        c("v_bfe_u32 v8, v6, 1, 2")
        c("v_bfe_u32 v9, v5, 1, 1")
        c("v_lshl_add_u32 v9, s23, 1, v9")
        c("v_xor_b32 v8, v8, v9")
        c("v_and_b32 v6, 1, v6")
        c(f"v_mul_u32_u24 v{v}, 3072, v5")
        c(f"v_lshl_add_u32 v{v}, v7, 10, v{v}")
        c(f"v_lshl_add_u32 v{v}, v8, 5, v{v}")
        c(f"v_lshl_add_u32 v{v}, v6, 4, v{v}")
    c("s_lshl_b32 s20, s25, 7")
    c("s_mul_i32 s21, s23, 8*3072")
    c("s_add_u32 s20, s20, s21")
    c("s_mul_i32 s22, s23, 3072")
    c(f"s_add_u32 s22, s22, {B_BASE}")
    c("s_mov_b32 s24, s22")
    def stage():
        for b in range(4):
            for ii in range(3):
                c(f"s_add_u32 m0, s24, {b*6144 + ii*1024}")
                if ii == 0: c(f"s_add_u32 s21, s20, {b*16*3072}")
                else: c("s_nop 0")
                c(f"buffer_load_dwordx4 v{10+ii}, {sr(S_WQKV)}, s21 offen lds")
        c(f"s_add_u32 s20, s20, {64*3072}")
        c(f"s_add_u32 s24, s24, {B_SLOT}")
    c("s_mov_b32 s27, 4")
    c("s_barrier")
    c.label("P2_LPRE")
    stage()
    c("s_sub_u32 s27, s27, 1")
    c("s_cmp_lg_u32 s27, 0")
    c("s_cbranch_scc1 P2_LPRE")
    c("s_waitcnt vmcnt(36)")
    c("s_barrier")
    c("s_mov_b32 s24, s22")
    c("s_mov_b32 s27, 4")
    c.label("P2_LMAIN")
    c("s_waitcnt vmcnt(24)")
    c("s_barrier")
    stage()
    c("s_sub_u32 s27, s27, 1")
    c("s_cmp_lg_u32 s27, 0")
    c("s_cbranch_scc1 P2_LMAIN")
    for k in range(3):
        c(f"s_waitcnt vmcnt({24 - 12*k})")
        c("s_barrier")
    if FUSED:
        c("s_barrier")
        c(f"s_cmp_eq_u32 s{S_WAVE}, 8")
        c(f"s_cbranch_scc0 {END}")
        c("s_lshl_b32 s20, s25, 7")
        c("s_lshl_b32 s21, s26, 2")
        c("s_add_u32 s20, s20, s21")
        c(f"s_add_u32 s20, s20, {F2B}")
        signal(c, 20, 4, 0)
    else:
        c("s_endpgm")
    c.label(END)

QA, QB, NA, NB, SA, SB, PA, PB, OA, OB = 8, 12, 16, 32, 48, 64, 80, 88, 96, 112
KF = [128, 132]; VF = [136, 144]
LV = 65536; CMB = 131072; HLP = CMB + 4 * 18 * 256
NA_T = 6; NP_A = 4

def unit(a, S, P, mf, loads=None):
    a(mf[0])
    for p in range(8):
        a(f"v_exp_f32 v{S+2*p}, v{S+2*p}")
        a(f"v_exp_f32 v{S+2*p+1}, v{S+2*p+1}")
        if p == 2: a(mf[1])
        if p == 5: a(mf[2])
        if p >= 1:
            j = p - 1
            a(f"v_cvt_pk_bf16_f32 v{P+j}, v{S+2*j}, v{S+2*j+1}")
    a(f"v_cvt_pk_bf16_f32 v{P+7}, v{S+14}, v{S+15}")
    if loads:
        for l in loads: a(l)
def kv_loads(kb, vb, koff, voff, filler):
    return [f"ds_read_b128 {r4(KF[kb])}, v6 offset:{koff}", "s_mov_b64 exec, s[4:5]", filler,
            f"ds_read_b128 {r4(VF[vb])}, v7 offset:{voff}", f"ds_read_b128 {r4(VF[vb]+4)}, v7 offset:{voff+512}", "s_mov_b64 exec, -1"]
def smfma(S, kf, q, C):
    c = r16(C) if C is not None else "0"
    return f"v_mfma_f32_32x32x16_bf16 {r16(S)}, {r4(kf)}, {r4(q)}, {c}"
def pv(O, vf, p):
    return f"v_mfma_f32_32x32x16_bf16 {r16(O)}, {r4(vf)}, {r4(p)}, {r16(O)}"
def rowmax(a, S, dst):
    a(f"v_max3_f32 v{dst}, v{S}, v{S+1}, v{S+2}")
    for i in range(3, 15, 2): a(f"v_max3_f32 v{dst}, v{dst}, v{S+i}, v{S+i+1}")
    a(f"v_max_f32 v{dst}, v{dst}, v{S+15}")
def negfill(a):
    for N in (NA, NB):
        a(f"v_mov_b32 v{N+1}, v{N}")
    for N in (NA, NB):
        a(f"v_permlane32_swap_b32 v{N}, v{N+1}")
    for N in (NA, NB):
        a(f"v_max_f32 v{N}, v{N}, v{N+1}")
    for N in (NA, NB):
        a(f"v_xor_b32 v{N}, 0x80000000, v{N}")
    for i in range(1, 16):
        a(f"v_mov_b32 v{NA+i}, v{NA}")
        a(f"v_mov_b32 v{NB+i}, v{NB}")

def p3(a):
    END = "P3_END"
    a("s_and_b32 s25, s2, 7")
    a("s_lshl_b32 s25, s25, 2")
    a("s_bfe_u32 s26, s2, 0x20003")
    a("s_add_u32 s25, s25, s26")
    a("s_lshr_b32 s26, s2, 5")
    a("s_lshl_b32 s27, s25, 16")
    a("v_lshlrev_b32 v4, 4, v1")
    a(f"s_cmp_ge_u32 s{S_WAVE}, 8")
    a("s_cbranch_scc1 P3_LOADER")
    a("v_lshrrev_b32 v3, 5, v1")
    a("v_and_b32 v5, 15, v1")
    a("v_lshlrev_b32 v5, 4, v5")
    a("v_lshl_add_u32 v5, v3, 8, v5")
    a("s_mov_b32 s4, 0x0000ffff")
    a("s_mov_b32 s5, 0x0000ffff")
    a(f"s_and_b32 s8, s{S_WAVE}, 3")
    a(f"s_lshr_b32 s9, s{S_WAVE}, 2")
    a("s_lshl_b32 s10, s26, 18")
    a("s_lshl_b32 s11, s8, 16")
    a("s_add_u32 s10, s10, s11")
    a("s_lshl_b32 s11, s25, 10")
    a("s_add_u32 s10, s10, s11")
    a(f"s_add_u32 s10, s10, {WS_O}")
    a("s_add_u32 s11, s10, 32768")
    a("s_lshl_b32 s12, s9, 15")
    a("v_add_u32 v6, s12, v4")
    a("v_add_u32 v7, s12, v5")
    a(f"v_add_u32 v7, {LV}, v7")
    a("s_lshl_b32 s12, s8, 11")
    a(f"s_add_u32 s12, s12, {CMB}")
    a("v_add_u32 v2, s12, v4")
    a(f"s_mov_b32 s6, {NP_A // 2}")
    a("s_mov_b32 s7, 0")
    a("v_and_b32 v3, 27, v1")
    a("v_cmp_eq_u32 vcc, 16, v3")
    a("v_mov_b32 v3, 0x3f803f80")
    a(f"v_cndmask_b32 v{VF[0]}, 0, v3, vcc")
    for r in range(VF[0] + 1, VF[0] + 16): a(f"v_mov_b32 v{r}, v{VF[0]}")
    for r in range(OA, OA + 32): a(f"v_mov_b32 v{r}, 0")
    for r in range(PB, PB + 8): a(f"v_mov_b32 v{r}, 0")
    a("s_barrier")
    a(f"ds_read_b128 {r4(QA)}, v2")
    a(f"ds_read_b128 {r4(QB)}, v2 offset:1024")
    a(f"ds_read_b128 {r4(PA)}, v4")
    a.label("P3_RESTART")
    a(f"ds_read_b128 {r4(KF[0])}, v6")
    a(f"ds_read_b128 {r4(KF[1])}, v6 offset:1024")
    a("s_mov_b64 exec, s[4:5]")
    a(f"ds_read_b128 {r4(VF[0])}, v7")
    a(f"ds_read_b128 {r4(VF[0]+4)}, v7 offset:512")
    a("s_mov_b64 exec, -1")
    a("s_waitcnt lgkmcnt(0)")
    a("s_cmp_eq_u32 s7, 0")
    a("s_cbranch_scc0 P3_HAVEM")
    a(smfma(SA, PA, QA, None))
    a(smfma(SB, PA, QB, None))
    rowmax(a, SA, NA)
    rowmax(a, SB, NB)
    negfill(a)
    a.label("P3_HAVEM")
    stamp_mid(a, 0 if not FUSED else 2)
    a("s_nop 1")
    a(smfma(SA, KF[0], QA, NA))
    a("s_nop 7")
    a("s_nop 3")
    b = Asm()
    b.lines.append(".p2align 6")
    b.label("P3_LOOP")
    for par in range(2):
        kc, kn = KF[par], KF[1 - par]
        vc, vp = VF[par], VF[1 - par]
        unit(b, SA, PA, [smfma(SB, kc, QB, NB), pv(OB, vp, PB), pv(OB, vp + 4, PB + 4)],
             kv_loads(par, 1 - par, (par + 2) * 1024, (par + 1) * 1024, ["s_sub_u32 s6, s6, 1", "s_nop 0"][par]))
        b("s_waitcnt lgkmcnt(3)")
        unit(b, SB, PB, [smfma(SA, kn, QA, NA), pv(OA, vc, PA), pv(OA, vc + 4, PA + 4)])
    b("v_add_u32 v6, 0x800, v6")
    b("v_add_u32 v7, 0x800, v7")
    b("s_cmp_lg_u32 s6, 0")
    b("s_cbranch_scc1 P3_LOOP")
    loop = b.loop(b.lines)
    assert len(loop) == len(b.lines)
    a.lines += loop
    c = a
    c("s_cmp_eq_u32 s7, 0")
    c("s_cbranch_scc0 P3_DONE")
    c("s_barrier")
    c("s_mov_b32 s7, 1")
    c(f"s_mov_b32 s6, {(32 - NP_A) // 2}")
    c("s_branch P3_LOOP")
    c.label("P3_DONE")
    c("s_nop 1")
    c(pv(OB, VF[1], PB))
    c(pv(OB, VF[1] + 4, PB + 4))
    c("s_waitcnt lgkmcnt(0)")
    stamp_mid(c, 1 if not FUSED else 3)
    c("s_cmp_eq_u32 s7, 1")
    c("s_cbranch_scc0 P3_FINAL")
    c("v_lshlrev_b32 v2, 2, v1")
    c("s_mul_i32 s12, s8, 4608")
    c(f"s_add_u32 s12, s12, {CMB}")
    c("v_add_u32 v2, s12, v2")
    c("s_cmp_eq_u32 s9, 0")
    c("s_cbranch_scc1 P3_WAITP")
    c("s_nop 7")
    c("s_nop 3")
    for i in range(9):
        c(f"ds_write_b32 v2, v{OA+i} offset:{i*256}")
        c(f"ds_write_b32 v2, v{OB+i} offset:{(9+i)*256}")
    c("s_waitcnt lgkmcnt(0)")
    c("s_barrier")
    if FUSED: c("s_barrier")
    finish(c, 2, END, 48)
    c.label("P3_WAITP")
    c("s_barrier")
    for i in range(9): c(f"ds_read_b32 v{SA+i}, v2 offset:{i*256}")
    for i in range(9): c(f"ds_read_b32 v{SB+i}, v2 offset:{(9+i)*256}")
    c("s_waitcnt lgkmcnt(9)")
    for i in range(9): c(f"v_add_f32 v{OA+i}, v{OA+i}, v{SA+i}")
    c("s_waitcnt lgkmcnt(0)")
    for i in range(9): c(f"v_add_f32 v{OB+i}, v{OB+i}, v{SB+i}")
    c(f"v_mov_b32 v{SA}, 0")
    for O in (OA, OB):
        for i in range(0, 8, 2): c(f"v_max3_f32 v{SA}, v{SA}, abs(v{O+i}), abs(v{O+i+1})")
    c(f"v_add_f32 v{SA+1}, v{OA}, v{OA+1}")
    c(f"v_add_f32 v{SA+2}, v{OB}, v{OB+1}")
    for i in range(2, 8):
        c(f"v_add_f32 v{SA+1}, v{SA+1}, v{OA+i}")
        c(f"v_add_f32 v{SA+2}, v{SA+2}, v{OB+i}")
    c("s_mov_b32 s12, 0x71800000")
    c("s_mov_b32 s13, 0x21800000")
    c(f"v_cmp_gt_f32 vcc, s12, v{OA+8}")
    c(f"v_cmp_gt_f32 s[14:15], s12, v{OB+8}")
    c(f"v_cmp_lt_f32 s[16:17], s13, v{OA+8}")
    c(f"v_cmp_lt_f32 s[18:19], s13, v{OB+8}")
    c("s_mov_b32 s13, 0x7f000000")
    c(f"v_cmp_gt_f32 s[20:21], s13, v{SA}")
    c(f"v_cmp_o_f32 s[22:23], v{SA+1}, v{SA+2}")
    c("s_and_b64 vcc, vcc, s[14:15]")
    c("s_and_b64 s[16:17], s[16:17], s[18:19]")
    c("s_and_b64 s[20:21], s[20:21], s[22:23]")
    c("s_and_b64 vcc, vcc, s[16:17]")
    c("s_and_b64 vcc, vcc, s[20:21]")
    c("s_cmp_eq_u64 vcc, -1")
    c("s_cbranch_scc0 P3_FALLBACK")
    c.label("P3_FINAL")
    c("s_nop 7")
    c("s_nop 3")
    for (O, P, so) in ((OA, PA, 10), (OB, PB, 11)):
        c(f"v_rcp_f32 v{O+8}, v{O+8}")
        for i in range(8): c(f"v_mul_f32 v{O+i}, v{O+i}, v{O+8}")
        for j in range(4): c(f"v_cvt_pk_bf16_f32 v{P+j}, v{O+2*j}, v{O+2*j+1}")
        c(f"buffer_store_dwordx4 {r4(P)}, v4, {sr(S_WS)}, s{so} offen {SC}")
    if FUSED:
        c("s_waitcnt vmcnt(0)")
        c("s_barrier")
    finish(c, 2, END, 48)
    c.label("P3_FALLBACK")
    c("s_mov_b32 s7, 2")
    c("s_mov_b32 s6, 64")
    c("v_mov_b32 v6, v4")
    c(f"v_mov_b32 v{NA}, 0xff800000")
    c(f"v_mov_b32 v{NB}, 0xff800000")
    c.label("P3_FBLOOP")
    c(f"ds_read_b128 {r4(KF[0])}, v6")
    c("s_waitcnt lgkmcnt(0)")
    c(smfma(SA, KF[0], QA, None))
    c(smfma(SB, KF[0], QB, None))
    for (S, N) in ((SA, NA), (SB, NB)):
        for i in range(0, 16, 2): c(f"v_max3_f32 v{N}, v{N}, v{S+i}, v{S+i+1}")
    c("v_add_u32 v6, 0x400, v6")
    c("s_sub_u32 s6, s6, 1")
    c("s_cmp_lg_u32 s6, 0")
    c("s_cbranch_scc1 P3_FBLOOP")
    negfill(c)
    for r in range(OA, OA + 32): c(f"v_mov_b32 v{r}, 0")
    for r in range(PB, PB + 8): c(f"v_mov_b32 v{r}, 0")
    c("v_mov_b32 v6, v4")
    c(f"v_add_u32 v7, {LV}, v5")
    c("s_mov_b32 s6, 32")
    c("s_branch P3_RESTART")
    c.label("P3_LOADER")
    c(f"s_sub_u32 s23, s{S_WAVE}, 8")
    c("s_lshr_b32 s20, s25, 2")
    c("s_lshl_b32 s20, s20, 7")
    c(f"s_add_u32 s20, s20, {F2B}")
    poll(c, 20, 32, 8, 1)
    c(f"s_mul_i32 s20, s23, {WS_V - WS_K}")
    c("s_add_u32 s20, s20, s27")
    c(f"s_add_u32 s20, s20, {WS_K}")
    c("s_lshl_b32 s21, s23, 16")
    c("s_lshl_b32 s22, s26, 13")
    c("s_add_u32 s22, s22, s27")
    c("s_lshl_b32 s24, s23, 12")
    c("s_add_u32 s22, s22, s24")
    c(f"s_add_u32 s22, s22, {WS_Q}")
    c(f"s_add_u32 s24, s24, {CMB}")
    c(f"s_mov_b32 s6, {NA_T}")
    c("s_mov_b32 s7, 0")
    c.label("P3_LKV")
    for hf in range(2):
        c(f"s_add_u32 m0, s21, {hf*32768}")
        c(f"s_add_u32 s8, s20, {hf*32768}")
        c(f"buffer_load_dwordx4 v4, {sr(S_WS)}, s8 offen {SC} lds")
    c("s_add_u32 s20, s20, 1024")
    c("s_add_u32 s21, s21, 1024")
    c("s_sub_u32 s6, s6, 1")
    c("s_cmp_lg_u32 s6, 0")
    c("s_cbranch_scc1 P3_LKV")
    c("s_cmp_eq_u32 s7, 0")
    c("s_cbranch_scc0 P3_LKV2")
    for i in range(4):
        c(f"s_add_u32 m0, s24, {i*1024}")
        c(f"s_add_u32 s8, s22, {i*1024}")
        c(f"buffer_load_dwordx4 v4, {sr(S_WS)}, s8 offen {SC} lds")
    c("s_waitcnt vmcnt(0)")
    if FUSED: stamp_mid(c, 2)
    c("s_barrier")
    c("s_mov_b32 s7, 1")
    c(f"s_mov_b32 s6, {32 - NA_T}")
    c("s_branch P3_LKV")
    c.label("P3_LKV2")
    c("s_waitcnt vmcnt(0)")
    c("s_barrier")
    c(f"s_cmp_eq_u32 s{S_WAVE}, 8")
    c("s_cbranch_scc0 P3_HPREF")
    c("s_cmp_ge_u32 s2, 224")
    c("s_cbranch_scc1 P3_LEND")
    c("s_cmp_ge_u32 s2, 112")
    for q in range(4): c(f"s_cselect_b32 s{4+q}, s{S_WU+q}, s{S_WG+q}")
    c("s_cselect_b32 s8, 112, 0")
    c("s_cselect_b32 s9, 14336, 0")
    c("s_mov_b32 s7, 0x00020000")
    c("s_sub_u32 s8, s2, s8")
    c("v_lshrrev_b32 v9, 1, v1")
    c("v_mul_u32_u24 v9, 3584, v9")
    c("v_and_b32 v10, 1, v1")
    c("v_lshl_add_u32 v9, v10, 4, v9")
    c("s_lshl_b32 s10, s8, 5")
    c("v_and_b32 v10, 15, v1")
    c("v_lshrrev_b32 v11, 4, v1")
    c("v_lshlrev_b32 v12, 10, v10")
    c("v_lshl_add_u32 v12, v11, 4, v12")
    c(f"v_add_u32 v12, {WS_AB}, v12")
    c("v_cmp_gt_u32 vcc, 2, v10")
    c("v_mov_b32 v13, 0x7ff00000")
    c("v_cndmask_b32 v12, v13, v12, vcc")
    c("v_bfe_u32 v13, v1, 2, 2")
    c("v_lshl_add_u32 v13, v11, 3, v13")
    c("v_lshlrev_b32 v13, 5, v13")
    c("v_and_b32 v14, 3, v1")
    c("v_lshl_add_u32 v13, v14, 3, v13")
    c(f"v_add_u32 v13, {HLP}, v13")
    for r in range(4): c(f"v_mov_b32 v{16+r}, 0")
    for i in range(16):
        c(f"buffer_load_dwordx4 {r4(32+4*i)}, v12, {sr(S_WS)}, 0 offen offset:{64*i}")
    for half in range(2):
        for i in range(8):
            c(f"s_mov_b32 m0, {HLP + i*1024}")
            c(f"s_add_u32 s11, s10, {(half*8+i)*32*3584}")
            c("buffer_load_dwordx4 v9, s[4:7], s11 offen lds")
        c("s_waitcnt vmcnt(0)")
        for i in range(8):
            c(f"ds_read_b64_tr_b16 v[{96+4*i}:{97+4*i}], v13 offset:{i*1024}")
            c(f"ds_read_b64_tr_b16 v[{98+4*i}:{99+4*i}], v13 offset:{i*1024+128}")
        c("s_waitcnt lgkmcnt(0)")
        for i in range(8):
            k = half * 8 + i
            c(f"v_mfma_f32_16x16x32_bf16 v[16:19], {r4(32+4*k)}, {r4(96+4*i)}, v[16:19]")
    c("v_cvt_pk_bf16_f32 v6, v16, v17")
    c("v_lshlrev_b32 v10, 16, v6")
    c("v_and_b32 v11, 0xffff0000, v6")
    c("v_sub_f32 v12, v16, v10")
    c("v_sub_f32 v13, v17, v11")
    c("v_cvt_pk_bf16_f32 v14, v10, v12")
    c("v_cvt_pk_bf16_f32 v15, v11, v13")
    c("v_lshlrev_b32 v10, 3, v1")
    c("s_lshl_b32 s10, s8, 7")
    c("s_add_u32 s10, s10, s9")
    c(f"s_add_u32 s10, s10, {WS_EXT}")
    c("s_mov_b64 exec, 0xffff")
    c(f"buffer_store_dwordx2 v[14:15], v10, {sr(S_WS)}, s10 offen {SC}")
    c("s_mov_b64 exec, -1")
    if FUSED:
        c("s_waitcnt vmcnt(0)")
        c("s_lshl_b32 s10, s2, 2")
        c(f"s_add_u32 s10, s10, {FEB}")
        signal(c, 10, 4)
    c("s_branch P3_LEND")
    c.label("P3_HPREF")
    c("v_lshlrev_b32 v8, 7, v1")
    c("s_lshr_b32 s4, s2, 3")
    c("s_lshl_b32 s5, s4, 14")
    c(f"buffer_load_dword v16, v8, {sr(S_WO)}, s5 offen")
    c("s_add_u32 s5, s5, 8192")
    c(f"buffer_load_dword v17, v8, {sr(S_WO)}, s5 offen")
    c("s_and_b32 s6, s2, 1")
    c("s_mul_i32 s6, s6, 1792")
    c("s_mul_i32 s7, s4, 16*3584")
    c("s_add_u32 s6, s6, s7")
    for i in range(4):
        c(f"v_add_u32 v9, {64*i}, v1")
        c("v_mul_u32_u24 v10, 4682, v9")
        c("v_lshrrev_b32 v10, 16, v10")
        c("v_mul_u32_u24 v11, 14, v10")
        c("v_sub_u32 v11, v9, v11")
        c("v_mul_u32_u24 v10, 3584, v10")
        c("v_lshl_add_u32 v10, v11, 7, v10")
        if i == 3:
            c("v_cmp_gt_u32 vcc, 224, v9")
            c("v_mov_b32 v13, 0x7ff00000")
            c("v_cndmask_b32 v10, v13, v10, vcc")
        c(f"buffer_load_dword v{18+2*i}, v10, {sr(S_WG)}, s6 offen")
        c(f"buffer_load_dword v{19+2*i}, v10, {sr(S_WU)}, s6 offen")
    c("s_mul_i32 s5, s2, 7168")
    c("s_mov_b32 s6, 0xffffffff")
    c("s_mov_b32 s7, 0x00ffffff")
    c("s_mov_b64 exec, s[6:7]")
    c(f"buffer_load_dword v26, v8, {sr(S_WD)}, s5 offen")
    c("s_mov_b64 exec, -1")
    c.label("P3_LEND")
    if FUSED:
        c("s_waitcnt vmcnt(0)")
        c("s_barrier")
        stamp_mid(c, 3)
        c("s_barrier")
        c(f"s_cmp_eq_u32 s{S_WAVE}, 8")
        c(f"s_cbranch_scc0 {END}")
        c("s_lshl_b32 s20, s26, 7")
        c("s_lshl_b32 s21, s25, 2")
        c("s_add_u32 s20, s20, s21")
        c(f"s_add_u32 s20, s20, {F3B}")
        signal(c, 20, 4, 4)
    else:
        c("s_endpgm")
    c.label(END)

def tile64_ids(a):
    a("s_bfe_u32 s25, s2, 0x30003")
    a("s_and_b32 s26, s2, 7")
    a("s_lshl_b32 s26, s26, 2")
    a("s_lshr_b32 s27, s2, 6")
    a("s_add_u32 s26, s26, s27")

def tile64_addrs(a, vA, vB, t0):
    a(f"v_lshlrev_b32 v{vA}, 4, v1")
    a("s_lshl_b32 s20, s23, 12")
    a(f"v_add_u32 v{vA}, s20, v{vA}")
    a(f"v_lshrrev_b32 v{t0+1}, 5, v1")
    a(f"v_bfe_u32 v{t0}, v1, 2, 2")
    a(f"v_lshl_add_u32 v{t0+2}, v{t0+1}, 2, v{t0}")
    a(f"v_lshlrev_b32 v{vB}, 7, v{t0+2}")
    a(f"v_lshrrev_b32 v{t0}, 1, v{t0}")
    a(f"v_xor_b32 v{t0}, s24, v{t0}")
    a(f"v_lshl_add_u32 v{vB}, v{t0}, 6, v{vB}")
    a(f"v_bfe_u32 v{t0}, v1, 4, 1")
    a(f"v_lshl_add_u32 v{vB}, v{t0}, 5, v{vB}")
    a(f"v_and_b32 v{t0}, 3, v1")
    a(f"v_lshl_add_u32 v{vB}, v{t0}, 3, v{vB}")
    a(f"v_add_u32 v{vB}, 8192, v{vB}")
    a(f"v_add_u32 v{vA+1}, 65536, v{vA}")
    a(f"v_add_u32 v{vB+1}, 65536, v{vB}")

def bload64_addr(c, v):
    c("v_lshrrev_b32 v3, 3, v1")
    c("v_bfe_u32 v8, v1, 2, 1")
    c("v_bfe_u32 v9, v1, 4, 1")
    c("v_xor_b32 v8, v8, v9")
    c(f"v_lshlrev_b32 v{v}, 10, v3")
    c(f"v_lshl_add_u32 v{v}, v8, 6, v{v}")
    c("v_and_b32 v8, 3, v1")
    c(f"v_lshl_add_u32 v{v}, v8, 4, v{v}")

def p4(a):
    STG = 16384; XT = 8 * STG; TB = XT + 8192
    END = "P4_END"
    tile64_ids(a)
    a(f"s_cmp_ge_u32 s{S_WAVE}, 8")
    a("s_cbranch_scc1 P4_LOADER")
    a(f"s_cmp_ge_u32 s{S_WAVE}, 4")
    a("s_cbranch_scc1 P4_IDLE")
    a(f"s_and_b32 s23, s{S_WAVE}, 1")
    a(f"s_lshr_b32 s24, s{S_WAVE}, 1")
    a("v_and_b32 v3, 31, v1")
    a("v_lshrrev_b32 v4, 5, v1")
    a("s_lshl_b32 s4, s26, 16")
    a("s_lshl_b32 s5, s23, 15")
    a("s_add_u32 s4, s4, s5")
    a("s_lshl_b32 s5, s25, 12")
    a("s_add_u32 s4, s4, s5")
    a("s_lshl_b32 s5, s24, 11")
    a("s_add_u32 s4, s4, s5")
    a(f"s_add_u32 s5, s4, {WS_X1S}")
    a(f"s_add_u32 s4, s4, {WS_X1}")
    a("s_lshl_b32 s6, s26, 10")
    a("s_lshl_b32 s7, s23, 9")
    a("s_add_u32 s6, s6, s7")
    a("s_lshl_b32 s7, s25, 15")
    a("s_add_u32 s6, s6, s7")
    a("s_lshl_b32 s7, s24, 3")
    a("s_add_u32 s6, s6, s7")
    a(f"s_add_u32 s6, s6, {WS_ST2}")
    tile64_addrs(a, 16, 20, 24)
    a("v_bfe_u32 v5, v1, 1, 3")
    a("s_lshl_b32 s7, s24, 2")
    a("v_xor_b32 v5, s7, v5")
    a("v_lshlrev_b32 v8, 7, v3")
    a("v_lshl_add_u32 v8, v5, 4, v8")
    a("v_lshl_add_u32 v8, v4, 3, v8")
    a("s_lshl_b32 s7, s23, 12")
    a(f"s_add_u32 s7, s7, {XT}")
    a("v_add_u32 v8, s7, v8")
    for g in range(1, 4): a(f"v_xor_b32 v{8+g}, {16*g}, v8")
    a("v_lshlrev_b32 v12, 4, v4")
    a("s_lshl_b32 s7, s24, 7")
    a(f"s_add_u32 s7, s7, {TB}")
    a("v_add_u32 v12, s7, v12")
    a("v_lshlrev_b32 v5, 4, v1")
    a("v_lshlrev_b32 v6, 4, v3")
    a("v_lshl_add_u32 v6, v4, 2, v6")
    ACC = 32
    for r in range(ACC, ACC + 16): a(f"v_mov_b32 v{r}, 0")
    FR = [48, 56]
    def reads(s):
        c, ks = divmod(s, 4)
        F = FR[s & 1]
        hi = int(c >= 4)
        off = (c % 4) * STG
        a(f"ds_read_b128 {r4(F)}, v{16+hi} offset:{off + ks*1024}")
        a(f"ds_read_b64_tr_b16 v[{F+4}:{F+5}], v{20+hi} offset:{off + ks*2048}")
        a(f"ds_read_b64_tr_b16 v[{F+6}:{F+7}], v{20+hi} offset:{off + ks*2048 + 1024}")
    a("s_barrier")
    stamp_mid(a, 0 if not FUSED else 4)
    reads(0)
    for s in range(32):
        if s + 1 < 32:
            if (s + 1) % 8 == 0: a("s_barrier")
            reads(s + 1)
            a("s_waitcnt lgkmcnt(3)")
        else:
            for g in range(4): a(f"ds_read_b64 v[{64+2*g}:{65+2*g}], v{8+g}")
            for g in range(4): a(f"ds_read_b128 {r4(72+4*g)}, v12 offset:{g*32}")
            for g in range(4): a(f"ds_read_b128 {r4(104+4*g)}, v12 offset:{256+g*32}")
            a("s_waitcnt lgkmcnt(12)")
        F = FR[s & 1]
        a(f"v_mfma_f32_32x32x16_bf16 {r16(ACC)}, {r4(F+4)}, {r4(F)}, {r16(ACC)}")
    stamp_mid(a, 1 if not FUSED else 5)
    a("s_waitcnt lgkmcnt(8)")
    for g in range(4):
        for d in range(2):
            a(f"v_lshlrev_b32 v{88+4*g+2*d}, 16, v{64+2*g+d}")
            a(f"v_and_b32 v{89+4*g+2*d}, 0xffff0000, v{64+2*g+d}")
    a("s_waitcnt lgkmcnt(0)")
    for r in range(16): a(f"v_fma_f32 v{88+r}, v{72+r}, v{ACC+r}, v{88+r}")
    for j in range(8): a(f"v_cvt_pk_bf16_f32 v{48+j}, v{88+2*j}, v{89+2*j}")
    for j in range(8):
        a(f"v_lshlrev_b32 v{88+2*j}, 16, v{48+j}")
        a(f"v_and_b32 v{89+2*j}, 0xffff0000, v{48+j}")
    for r in range(16): a(f"v_mul_f32 v{104+r}, v{104+r}, v{88+r}")
    for j in range(8): a(f"v_cvt_pk_bf16_f32 v{72+j}, v{104+2*j}, v{105+2*j}")
    a(f"buffer_store_dwordx4 v[72:75], v5, {sr(S_WS)}, s5 offen {SC}")
    a(f"buffer_store_dwordx4 v[76:79], v5, {sr(S_WS)}, s5 offen offset:1024 {SC}")
    a("v_add_f32 v56, v88, v89")
    a("v_mul_f32 v57, v88, v88")
    a("v_add_f32 v58, v90, v91")
    a("v_mul_f32 v59, v89, v89")
    a("v_fmac_f32 v57, v90, v90")
    a("v_fmac_f32 v59, v91, v91")
    for r in range(4, 16, 2):
        a(f"v_add_f32 v56, v56, v{88+r}")
        a(f"v_fmac_f32 v57, v{88+r}, v{88+r}")
        a(f"v_add_f32 v58, v58, v{89+r}")
        a(f"v_fmac_f32 v59, v{89+r}, v{89+r}")
    a("v_add_f32 v56, v56, v58")
    a("v_add_f32 v57, v57, v59")
    a("v_permlane32_swap_b32 v56, v57")
    a("v_add_f32 v56, v56, v57")
    a(f"buffer_store_dword v56, v6, {sr(S_WS)}, s6 offen {SC}")
    a(f"buffer_store_dwordx4 v[48:51], v5, {sr(S_WS)}, s4 offen {SC}")
    a(f"buffer_store_dwordx4 v[52:55], v5, {sr(S_WS)}, s4 offen offset:1024 {SC}")
    if FUSED:
        a("s_waitcnt vmcnt(0)")
        a("s_barrier")
    finish(a, 3, END, 88)
    c = a
    c.label("P4_IDLE")
    if FUSED:
        barriers(c, 5)
        c(f"s_branch {END}")
    else:
        c("s_endpgm")
    c.label("P4_LOADER")
    c(f"s_cmp_eq_u32 s{S_WAVE}, 8")
    c("s_cbranch_scc0 P4_LB")
    c("v_lshrrev_b32 v3, 3, v1")
    c("v_and_b32 v4, 7, v1")
    c("v_lshrrev_b32 v5, 4, v1")
    c("v_xor_b32 v6, v4, v5")
    c("v_lshlrev_b32 v10, 10, v3")
    c("v_lshl_add_u32 v10, v6, 4, v10")
    c("v_xor_b32 v11, 64, v10")
    c("v_lshlrev_b32 v12, 4, v1")
    c("s_lshl_b32 s4, s26, 16")
    c("s_lshl_b32 s5, s25, 7")
    c("s_add_u32 s5, s5, s4")
    def xtile():
        for i in range(8):
            c(f"s_mov_b32 m0, {XT + i*1024}")
            c(f"s_add_u32 s6, s5, {i*8192}")
            c(f"buffer_load_dwordx4 v{10 + (i & 1)}, {sr(S_X)}, s6 offen lds")
    if FUSED: xtile()
    c("s_lshr_b32 s6, s26, 2")
    c("s_lshl_b32 s6, s6, 7")
    c(f"s_add_u32 s6, s6, {F3B}")
    poll(c, 6, 32, 14, 5)
    c(f"s_add_u32 s4, s4, {WS_O}")
    c("s_mov_b32 s7, 0")
    c("s_mov_b32 s8, 8")
    c.label("P4_LA")
    for i in range(8):
        tt, k = i >> 2, i & 3
        c(f"s_add_u32 m0, s7, {i*1024}")
        c(f"s_add_u32 s6, s4, {tt*32768 + k*1024}")
        c(f"buffer_load_dwordx4 v12, {sr(S_WS)}, s6 offen {SC} lds")
    c("s_add_u32 s4, s4, 4096")
    c(f"s_add_u32 s7, s7, {STG}")
    c("s_sub_u32 s8, s8, 1")
    c("s_and_b32 s9, s8, 5")
    c("s_cmp_eq_u32 s9, 1")
    c("s_cbranch_scc0 P4_LANB")
    c("s_waitcnt vmcnt(24)")
    c("s_barrier")
    c.label("P4_LANB")
    c("s_cmp_lg_u32 s8, 0")
    c("s_cbranch_scc1 P4_LA")
    if not FUSED: xtile()
    c(f"s_waitcnt vmcnt({16 if FUSED else 24})")
    c("s_barrier")
    c("s_waitcnt vmcnt(0)")
    c("s_barrier")
    if FUSED:
        c("s_barrier")
        c("s_lshr_b32 s4, s26, 1")
        c("s_lshl_b32 s4, s4, 7")
        c("s_and_b32 s5, s26, 1")
        c("s_lshl_b32 s5, s5, 3")
        c("s_add_u32 s5, s5, s25")
        c("s_lshl_b32 s5, s5, 2")
        c("s_add_u32 s4, s4, s5")
        c(f"s_add_u32 s4, s4, {F4B}")
        signal(c, 4, 4, 6)
        c(f"s_branch {END}")
    else:
        c("s_endpgm")
    c.label("P4_LB")
    bload64_addr(c, 10)
    c("s_lshl_b32 s4, s25, 7")
    c("s_mov_b32 s7, 8192")
    c("s_mov_b32 s8, 8")
    c.label("P4_LBL")
    for i in range(8):
        c(f"s_add_u32 m0, s7, {i*1024}")
        c(f"s_add_u32 s6, s4, {i*8192}")
        c(f"buffer_load_dwordx4 v10, {sr(S_WO)}, s6 offen lds")
    c("s_add_u32 s4, s4, 65536")
    c(f"s_add_u32 s7, s7, {STG}")
    c("s_sub_u32 s8, s8, 1")
    if not FUSED:
        c("s_and_b32 s9, s8, 5")
        c("s_cmp_eq_u32 s9, 1")
        c("s_cbranch_scc0 P4_LBNB")
        c("s_waitcnt vmcnt(24)")
        c("s_barrier")
        c.label("P4_LBNB")
    else:
        c("s_waitcnt vmcnt(48)")
    c("s_cmp_lg_u32 s8, 0")
    c("s_cbranch_scc1 P4_LBL")
    c("v_lshlrev_b32 v10, 2, v1")
    c("s_lshl_b32 s4, s25, 8")
    c(f"s_add_u32 s4, s4, {WS_MOD + 4096}")
    c(f"s_mov_b32 m0, {TB}")
    c("s_add_u32 s5, s4, 4096")
    c(f"buffer_load_dword v10, {sr(S_WS)}, s4 offen lds")
    c(f"s_mov_b32 m0, {TB + 256}")
    c("s_nop 0")
    c(f"buffer_load_dword v10, {sr(S_WS)}, s5 offen lds")
    if FUSED:
        c("s_waitcnt vmcnt(0)")
        barriers(c, 5)
    else:
        c("s_waitcnt vmcnt(18)")
        c("s_barrier")
        c("s_waitcnt vmcnt(0)")
        c("s_barrier")
        c("s_endpgm")
    c.label(END)

def p5(a):
    A_SZ = 16384; STG = 49152; NS = 3
    TST = NS * STG
    TEX = TST + 2048
    ACC = 32; FR = [96, 128]
    END = "P5_END"
    a("s_cmp_ge_u32 s2, 224")
    a(f"s_cbranch_scc1 {END if FUSED else 'P5_EXIT'}")
    a("s_lshr_b32 s27, s2, 3")
    a("s_mul_i32 s20, s27, 37")
    a("s_lshr_b32 s20, s20, 8")
    a("s_mul_i32 s21, s20, 7")
    a("s_sub_u32 s25, s27, s21")
    a("s_and_b32 s21, s2, 1")
    a("s_mul_i32 s21, s21, 7")
    a("s_add_u32 s25, s25, s21")
    a("s_bfe_u32 s26, s2, 0x20001")
    a("s_lshl_b32 s26, s26, 2")
    a("s_add_u32 s26, s26, s20")
    a(f"s_cmp_ge_u32 s{S_WAVE}, 8")
    a("s_cbranch_scc1 P5_LOADER")
    a(f"s_and_b32 s23, s{S_WAVE}, 1")
    a(f"s_lshr_b32 s24, s{S_WAVE}, 1")
    a("v_and_b32 v26, 15, v1")
    a("v_lshrrev_b32 v27, 4, v1")
    a("v_lshlrev_b32 v16, 9, v27")
    a("v_lshl_add_u32 v16, v26, 4, v16")
    a("s_lshl_b32 s20, s23, 13")
    a("v_add_u32 v16, s20, v16")
    a(f"v_add_u32 v17, {2*STG}, v16")
    a("v_bfe_u32 v28, v1, 2, 3")
    a("v_lshrrev_b32 v29, 5, v1")
    a("v_lshl_add_u32 v29, v29, 4, v28")
    a("v_lshlrev_b32 v18, 8, v29")
    a("s_lshl_b32 s20, s24, 1")
    a("v_xor_b32 v28, s20, v28")
    a("v_lshl_add_u32 v18, v28, 5, v18")
    a("v_and_b32 v28, 3, v1")
    a("v_lshl_add_u32 v18, v28, 3, v18")
    a(f"v_add_u32 v18, {A_SZ}, v18")
    a(f"v_add_u32 v19, {STG}, v18")
    a(f"v_add_u32 v20, {2*STG}, v18")
    for i in range(3): a(f"v_xor_b32 v{21+i}, 32, v{18+i}")
    for r in range(ACC, ACC + 64): a(f"v_mov_b32 v{r}, 0")
    a("v_lshlrev_b32 v24, 4, v26")
    a("s_lshl_b32 s20, s23, 10")
    a(f"s_add_u32 s20, s20, {TST}")
    a("v_add_u32 v24, s20, v24")
    a("v_lshlrev_b32 v25, 3, v26")
    a("s_lshl_b32 s20, s24, 8")
    a(f"s_add_u32 s20, s20, {TEX}")
    a("v_add_u32 v25, s20, v25")
    a("v_lshlrev_b32 v5, 9, v27")
    a("v_lshl_add_u32 v5, v26, 4, v5")
    a("s_lshl_b32 s4, s26, 2")
    a("s_lshl_b32 s5, s23, 1")
    a("s_add_u32 s4, s4, s5")
    a("s_mul_i32 s4, s4, 112*1024")
    a("s_lshl_b32 s5, s25, 13")
    a("s_add_u32 s4, s4, s5")
    a("s_lshl_b32 s5, s24, 11")
    a("s_add_u32 s4, s4, s5")
    a(f"s_add_u32 s4, s4, {WS_ACT}")
    a(f"s_add_u32 s5, s4, {112*1024}")
    def read_list(s):
        c, ks = divmod(s, 2)
        F = FR[s & 1]
        sl = c % NS
        va, oa = (16, sl * STG) if sl < 2 else (17, 0)
        A = [f"ds_read_b128 {r4(F+4*tt)}, v{va} offset:{oa + (tt>>1)*4096 + ks*2048 + (tt&1)*256}" for tt in range(4)]
        B = []
        for m in range(2):
            for fi in range(2):
                vb = (18 if fi == 0 else 21) + sl
                R = F + 16 + 8 * m + 4 * fi
                B.append(f"ds_read_b64_tr_b16 v[{R}:{R+1}], v{vb} offset:{m*16384 + ks*8192}")
                B.append(f"ds_read_b64_tr_b16 v[{R+2}:{R+3}], v{vb} offset:{m*16384 + ks*8192 + 2048}")
        return [A[0], B[0], B[1], A[1], A[2], A[3], B[2], B[3], B[4], B[5], B[6], B[7]]
    def mf_list(F):
        L = []
        need_w = {(0, 0): 3, (0, 1): 8, (1, 0): 10, (1, 1): 12}
        need_t = {0: 1, 1: 4, 2: 5, 3: 6}
        for m in range(2):
            for fi in range(2):
                for tt in range(4):
                    D = ACC + ((m * 2 + fi) * 4 + tt) * 4
                    L.append((f"v_mfma_f32_16x16x32_bf16 {r4(D)}, {r4(F+16+8*m+4*fi)}, {r4(F+4*tt)}, {r4(D)}", max(need_w[(m, fi)], need_t[tt])))
        return L
    a("s_barrier")
    stamp_mid(a, 1 if not FUSED else 6)
    for l in read_list(0): a(l)
    NR = 12
    E = FR[0]
    ext_reads = []
    for tt in range(4): ext_reads.append(f"ds_read_b128 {r4(E+4*tt)}, v24 offset:{tt*256}")
    for s in range(16):
        c, ks = divmod(s, 2)
        last = s == 15
        F = FR[s & 1]
        R = read_list(s + 1) if not last else ext_reads
        done = 0
        if ks == 1 and not last:
            a("s_waitcnt lgkmcnt(0)")
            a("s_barrier")
            done = NR
            if not FUSED: stamp_mid(a, 2 + c)
        ML = mf_list(F)
        issued = 0
        n = len(ML)
        for idx, (txt, need) in enumerate(ML):
            if need > done:
                a(f"s_waitcnt lgkmcnt({min(15, NR - need + issued)})")
                done = need
            a(txt)
            tgt = min(len(R), ((idx + 1) * len(R) * 4 + 3 * n - 1) // (3 * n))
            while issued < tgt:
                a(R[issued]); issued += 1
            if last and idx >= 4 and idx < 12:
                a(f"v_mov_b32 v{E+16+2*(idx-4)}, 0")
                a(f"v_mov_b32 v{E+17+2*(idx-4)}, 0")
    a("s_mov_b64 exec, 0xffff")
    for m in range(2):
        for fi in range(2):
            a(f"ds_read_b64 {r2(E+16+8*m+4*fi)}, v25 offset:{m*1024 + fi*128}")
    a("s_mov_b64 exec, -1")
    a("s_waitcnt lgkmcnt(4)")
    for tt in range(4):
        a(f"v_mov_b32 v{8+2*tt}, v{E+4*tt+2}")
        a(f"v_mov_b32 v{9+2*tt}, v{E+4*tt+3}")
        a(f"v_mov_b32 v{E+4*tt+2}, 0")
        a(f"v_mov_b32 v{E+4*tt+3}, 0")
    a("s_waitcnt lgkmcnt(0)")
    for txt, _ in mf_list(E): a(txt)
    stamp_mid(a, 9 if not FUSED else 7)
    T = FR[1]
    for tt in range(4):
        G = [ACC + (fi * 4 + tt) * 4 + r for fi in range(2) for r in range(4)]
        U = [g + 32 for g in G]
        Tt = T + (tt & 1) * 8
        Pk = T + 16 + tt * 4
        RG, CC = 8 + 2 * tt, 9 + 2 * tt
        for r in range(8): a(f"v_mul_f32 v{G[r]}, v{RG}, v{G[r]}")
        for r in range(8):
            a(f"v_exp_f32 v{Tt+r}, v{G[r]}")
            a(f"v_mul_f32 v{U[r]}, v{U[r]}, v{G[r]}")
        for r in range(8): a(f"v_fma_f32 v{Tt+r}, v{Tt+r}, v{CC}, v{CC}")
        for r in range(8): a(f"v_rcp_f32 v{Tt+r}, v{Tt+r}")
        for r in range(8): a(f"v_mul_f32 v{U[r]}, v{U[r]}, v{Tt+r}")
        for j in range(4): a(f"v_cvt_pk_bf16_f32 v{Pk+j}, v{U[2*j]}, v{U[2*j+1]}")
        a(f"buffer_store_dwordx4 {r4(Pk)}, v5, {sr(S_WS)}, s{4 + (tt>>1)} offen offset:{(tt&1)*256} {SC}")
    if FUSED:
        a("s_waitcnt vmcnt(0)")
        a("s_barrier")
    finish(a, 4, END, 96)
    c = a
    c.label("P5_LOADER")
    c(f"s_cmp_eq_u32 s{S_WAVE}, 8")
    c("s_cbranch_scc0 P5_LB")
    c("v_lshlrev_b32 v12, 4, v1")
    c("s_lshl_b32 s6, s26, 7")
    c(f"s_add_u32 s6, s6, {F4B}")
    poll(c, 6, 16, 14, 7)
    c("s_lshl_b32 s4, s26, 17")
    c(f"s_add_u32 s4, s4, {WS_X1S}")
    c.vm = []
    def astage(st):
        sl = st % NS
        for i in range(16):
            t, k = i >> 2, i & 3
            c(f"s_mov_b32 m0, {sl*STG + i*1024}")
            c(f"s_add_u32 s6, s4, {t*32768 + st*4096 + k*1024}")
            c(f"buffer_load_dwordx4 v12, {sr(S_WS)}, s6 offen {SC} lds", f"S{st}")
    astage(0); astage(1)
    c.wait_vm("S0")
    c("s_barrier")
    astage(2)
    c("s_lshl_b32 s8, s26, 11")
    c(f"s_add_u32 s8, s8, {WS_ST2}")
    P = 32
    for st in range(1, 8):
        c.wait_vm(f"S{st}")
        c("s_barrier")
        if st + 2 < 8: astage(st + 2)
        if st == 1:
            for hf in range(2):
                for p in range(8):
                    c(f"s_add_u32 s9, s8, {p*32768 + hf*1024}")
                    c(f"buffer_load_dwordx4 {r4(P+32*hf+4*p)}, v12, {sr(S_WS)}, s9 offen {SC}", "st")
        if st == 3:
            c.wait_vm("st")
            for hf in range(2):
                Q = P + 32 * hf
                for w in (16, 8, 4, 2):
                    for i in range(w): c(f"v_add_f32 v{Q+i}, v{Q+i}, v{Q+i+w}")
                c(f"v_mul_f32 v{Q+2}, 0x3b000000, v{Q}")
                c(f"v_fma_f32 v{Q+1}, -v{Q}, v{Q+2}, v{Q+1}")
                c(f"v_max_f32 v{Q+1}, 0, v{Q+1}")
            ln_finish(c, [P + 2, P + 34], [P + 1, P + 33], [P + 8, P + 40])
            for hf in range(2):
                Q = P + 32 * hf
                c(f"v_xor_b32 v{Q+2}, 0x80000000, v{Q+2}")
                c(f"v_cvt_pk_bf16_f32 v{Q+4}, v{Q+2}, v{Q+2}")
                c(f"v_cvt_pk_bf16_f32 v{Q+5}, v{Q+1}, v{Q+1}")
                c(f"v_mul_f32 v{Q+6}, {hex(NLOG2E)}, v{Q+8}")
                c(f"v_mul_f32 v{Q+7}, {hex(NLOG2E)}, v{Q+1}")
                c(f"v_add_u32 v13, {TST + hf*1024}, v12")
                c(f"ds_write_b128 v13, {r4(Q+4)}")
            c("s_waitcnt lgkmcnt(0)")
    if FUSED:
        c("s_barrier")
        c("s_lshl_b32 s4, s26, 7")
        c("s_lshl_b32 s5, s25, 2")
        c("s_add_u32 s4, s4, s5")
        c(f"s_add_u32 s4, s4, {F5B}")
        signal(c, 4, 4, 8)
        c(f"s_branch {END}")
    else:
        c("s_endpgm")
    c.label("P5_LB")
    c.vm = []
    c("v_lshrrev_b32 v5, 4, v1")
    c("v_mul_u32_u24 v13, 3584, v5")
    c("v_bfe_u32 v14, v1, 1, 3")
    c("v_xor_b32 v14, v14, v5")
    c("v_lshl_add_u32 v13, v14, 5, v13")
    c("v_and_b32 v14, 1, v1")
    c("v_lshl_add_u32 v13, v14, 4, v13")
    c("v_xor_b32 v12, 128, v13")
    c("s_lshl_b32 s4, s25, 8")
    c(f"s_mov_b32 s5, {A_SZ}")
    def bstage():
        L = uid("P5B")
        c("s_mov_b32 s6, s4")
        c("s_mov_b32 s7, s5")
        c("s_mov_b32 s8, 4")
        c.label(L)
        for i in range(4):
            for m in range(2):
                c(f"s_add_u32 m0, s7, {m*16384 + i*1024}")
                if m == 0: c(f"s_add_u32 s9, s6, {i*4*3584}")
                else: c("s_nop 0")
                c(f"buffer_load_dwordx4 v{13 - (i & 1)}, {sr(S_WG if m == 0 else S_WU)}, s9 offen lds")
        c(f"s_add_u32 s6, s6, {16*3584}")
        c("s_add_u32 s7, s7, 4096")
        c("s_sub_u32 s8, s8, 1")
        c("s_cmp_lg_u32 s8, 0")
        c(f"s_cbranch_scc1 {L}")
        c(f"s_add_u32 s4, s4, {64*3584}")
        c(f"s_add_u32 s5, s5, {STG}")
        c(f"s_cmp_ge_u32 s5, {NS*STG}")
        c(f"s_cselect_b32 s5, {A_SZ}, s5")
    c("s_mov_b32 s10, 8")
    c.label("P5_LBL")
    bstage()
    c("s_sub_u32 s10, s10, 1")
    c(f"s_cmp_ge_u32 s10, {6 if FUSED else 7}")
    c("s_cbranch_scc1 P5_LBL")
    if FUSED:
        c("s_cmp_eq_u32 s10, 5")
        c("s_cbranch_scc0 P5_LBN")
        c("s_waitcnt vmcnt(32)")
        c("s_barrier")
        c.label("P5_LBN")
    c("s_waitcnt vmcnt(32)")
    c("s_barrier")
    c("s_cmp_lg_u32 s10, 0")
    c("s_cbranch_scc1 P5_LBL")
    if FUSED:
        for m in range(2):
            c("s_lshl_b32 s6, s25, 5")
            c(f"s_add_u32 s6, s6, {FEB + m*448}")
            poll(c, 6, 8, 14)
    c("v_lshlrev_b32 v10, 4, v1")
    c("s_lshl_b32 s6, s25, 10")
    c(f"s_add_u32 s6, s6, {WS_EXT}")
    c(f"s_mov_b32 m0, {TEX}")
    c("s_add_u32 s7, s6, 14336")
    c(f"buffer_load_dwordx4 v10, {sr(S_WS)}, s6 offen {SC} lds")
    c(f"s_mov_b32 m0, {TEX + 1024}")
    c("s_nop 0")
    c(f"buffer_load_dwordx4 v10, {sr(S_WS)}, s7 offen {SC} lds")
    c("s_waitcnt vmcnt(0)")
    c("s_barrier")
    c("v_lshlrev_b32 v9, 7, v1")
    c("s_lshl_b32 s6, s27, 16")
    for i in range(8):
        c(f"s_add_u32 s7, s6, {i*8192}")
        c(f"buffer_load_dword v{16+i}, v9, {sr(S_WD)}, s7 offen")
    if FUSED:
        c("s_barrier")
    else:
        c.label("P5_EXIT")
        c("s_endpgm")
    c.label(END)

def p6(a):
    STG = 16384; NS = 7; NSTG = 28
    END = "P6_END"
    tile64_ids(a)
    a(f"s_cmp_ge_u32 s{S_WAVE}, 8")
    a("s_cbranch_scc1 P6_LOADER")
    a(f"s_cmp_ge_u32 s{S_WAVE}, 4")
    a(f"s_cbranch_scc1 {END}")
    a(f"s_and_b32 s23, s{S_WAVE}, 1")
    a(f"s_lshr_b32 s24, s{S_WAVE}, 1")
    a("v_and_b32 v3, 31, v1")
    a("v_lshrrev_b32 v4, 5, v1")
    a("v_lshlrev_b32 v7, 10, v3")
    a("v_lshl_add_u32 v7, v4, 3, v7")
    a("v_lshlrev_b32 v5, 4, v1")
    a("v_lshlrev_b32 v6, 4, v4")
    a("s_lshl_b32 s4, s26, 16")
    a("s_lshl_b32 s5, s23, 15")
    a("s_add_u32 s4, s4, s5")
    a("s_lshl_b32 s5, s25, 12")
    a("s_add_u32 s6, s4, s5")
    a("s_lshl_b32 s5, s24, 11")
    a("s_add_u32 s6, s6, s5")
    a(f"s_add_u32 s6, s6, {WS_X1}")
    a("s_lshl_b32 s5, s25, 7")
    a("s_add_u32 s4, s4, s5")
    a("s_lshl_b32 s5, s24, 6")
    a("s_add_u32 s4, s4, s5")
    a("s_lshl_b32 s7, s25, 8")
    a("s_lshl_b32 s5, s24, 7")
    a("s_add_u32 s7, s7, s5")
    a(f"s_add_u32 s7, s7, {WS_MOD + 4*2560}")
    tile64_addrs(a, 16, 20, 24)
    ACC = 32
    for r in range(ACC, ACC + 16): a(f"v_mov_b32 v{r}, 0")
    FR = [48, 56]
    def reads(A, slot, ks, par):
        F = FR[par]
        hi = int(slot >= 4)
        off = (slot % 4) * STG
        A(f"ds_read_b128 {r4(F)}, v{16+hi} offset:{off + ks*1024}")
        o1 = (ks >> 1) * 4096 + (ks & 1) * 1024
        A(f"ds_read_b64_tr_b16 v[{F+4}:{F+5}], v{20+hi} offset:{off + o1}")
        A(f"ds_read_b64_tr_b16 v[{F+6}:{F+7}], v{20+hi} offset:{off + o1 + 2048}")
    def mf(A, par):
        F = FR[par]
        A(f"v_mfma_f32_32x32x16_bf16 {r16(ACC)}, {r4(F+4)}, {r4(F)}, {r16(ACC)}")
    a("s_barrier")
    stamp_mid(a, 0 if not FUSED else 8)
    reads(a, 0, 0, 0)
    a(f"s_mov_b32 s8, {NSTG // NS}")
    b = a
    b.label("P6_LOOP")
    for sl in range(NS):
        for ks in range(4):
            par = ks & 1
            if ks < 3:
                reads(b, sl, ks + 1, 1 - par)
                b("s_waitcnt lgkmcnt(3)")
            else:
                b("s_waitcnt lgkmcnt(0)")
                if sl == NS - 1:
                    b("s_sub_u32 s8, s8, 1")
                    b("s_cmp_eq_u32 s8, 0")
                    b("s_cbranch_scc1 P6_DONE")
                    b("s_cmp_eq_u32 s8, 1")
                    b("s_cbranch_scc0 P6_NOEP")
                    b(f"buffer_load_dwordx4 v[64:67], v5, {sr(S_WS)}, s6 offen {SC}")
                    b(f"buffer_load_dwordx4 v[68:71], v5, {sr(S_WS)}, s6 offen offset:1024 {SC}")
                    for g in range(4):
                        b(f"buffer_load_dwordx4 v[{72+4*g}:{75+4*g}], v6, {sr(S_WS)}, s7 offen offset:{g*32}")
                    b.label("P6_NOEP")
                b("s_barrier")
                reads(b, (sl + 1) % NS, 0, 1 - par)
            mf(b, par)
    b("s_branch P6_LOOP")
    c = a
    c.label("P6_DONE")
    mf(c, 1)
    stamp_mid(c, 1 if not FUSED else 9)
    c("s_waitcnt vmcnt(0)")
    for j in range(8):
        c(f"v_lshlrev_b32 v{88+2*j}, 16, v{64+j}")
        c(f"v_and_b32 v{89+2*j}, 0xffff0000, v{64+j}")
    for r in range(16): c(f"v_fma_f32 v{88+r}, v{72+r}, v{ACC+r}, v{88+r}")
    for j in range(8): c(f"v_cvt_pk_bf16_f32 v{48+j}, v{88+2*j}, v{89+2*j}")
    for g in range(4):
        c(f"buffer_store_dwordx2 v[{48+2*g}:{49+2*g}], v7, {sr(S_OUT)}, s4 offen offset:{g*16}")
    stamp_end(c, 5 if not FUSED else 1, S_WSP, 64)
    c("s_endpgm")
    c.label("P6_LOADER")
    c(f"s_cmp_eq_u32 s{S_WAVE}, 8")
    c("s_cbranch_scc0 P6_LB")
    c("v_lshlrev_b32 v10, 4, v1")
    c("s_lshr_b32 s6, s26, 1")
    c("s_lshl_b32 s6, s6, 7")
    c(f"s_add_u32 s6, s6, {F5B}")
    poll(c, 6, 14, 14, 9)
    c("s_mul_i32 s4, s26, 2*112*1024")
    c(f"s_add_u32 s4, s4, {WS_ACT}")
    c("s_mov_b32 s5, 4096")
    c("s_mov_b32 s6, 0")
    c("s_mov_b32 s10, 1024")
    c(f"s_mov_b32 s11, {112*1024 - 3*1024}")
    for q in range(4): c(f"s_mov_b32 s{12+q}, s{S_WS+q}")
    c("s_branch P6_LGO")
    c.label("P6_LB")
    bload64_addr(c, 10)
    c("s_lshl_b32 s4, s25, 7")
    c("s_mov_b32 s5, 65536")
    c("s_mov_b32 s6, 8192")
    c("s_mov_b32 s10, 8192")
    c("s_mov_b32 s11, 8192")
    for q in range(4): c(f"s_mov_b32 s{12+q}, s{S_WD+q}")
    c.label("P6_LGO")
    c("s_mov_b32 s15, 0x00020000")
    def stage():
        c("s_mov_b32 s9, s4")
        for i in range(8):
            c(f"s_add_u32 m0, s7, {i*1024}")
            if i == 0: c("s_nop 0")
            else: c(f"s_add_u32 s9, s9, s{11 if i == 4 else 10}")
            c(f"buffer_load_dwordx4 v10, s[12:15], s9 offen {SC} lds")
        c("s_add_u32 s4, s4, s5")
        c(f"s_add_u32 s7, s7, {STG}")
        c(f"s_cmp_ge_u32 s7, {NS*STG}")
        c("s_cselect_b32 s7, s6, s7")
    c("s_mov_b32 s7, s6")
    c(f"s_mov_b32 s8, {NS}")
    c.label("P6_LPRE")
    stage()
    c("s_sub_u32 s8, s8, 1")
    c("s_cmp_lg_u32 s8, 0")
    c("s_cbranch_scc1 P6_LPRE")
    c(f"s_waitcnt vmcnt({8*(NS-1)})")
    c("s_barrier")
    c(f"s_mov_b32 s8, {NSTG - NS}")
    c.label("P6_LMAIN")
    c(f"s_waitcnt vmcnt({8*(NS-2)})")
    c("s_barrier")
    stage()
    c("s_sub_u32 s8, s8, 1")
    c("s_cmp_lg_u32 s8, 0")
    c("s_cbranch_scc1 P6_LMAIN")
    for k in range(NS - 1):
        c(f"s_waitcnt vmcnt({8*(NS-2-k)})")
        c("s_barrier")
    if FUSED and STAMP:
        c(f"s_cmp_eq_u32 s{S_WAVE}, 8")
        c(f"s_cbranch_scc0 {END}")
        stamp_end(c, 2, S_WSP, 16)
    c.label(END)
    c("s_endpgm")
```

```python
import sys, os
sys.path.insert(0, os.path.dirname(os.path.abspath(__file__)))
from common import *
import phases, gen_k1

LDS = 163840
def make_kernel(name, plist, fused):
    phases.FUSED = fused
    phases.SC = "sc1" if fused else ""
    a = Asm()
    prologue(a, name + "_EXIT")
    for p in plist:
        a.vm = []
        p(a)
    a.label(name + "_EXIT")
    a("s_endpgm")
    return fix_hazards(a.lines), phases.NV

def build(path, mode):
    ks = [("k1_kernel", gen_k1.k1, gen_k1.NWG, 256, 2048)]
    P = [phases.p2, phases.p3, phases.p4, phases.p5, phases.p6]
    if mode == "split":
        for i, p in enumerate(P):
            ks.append((f"k{i+2}_kernel", (lambda p=p, i=i: make_kernel(f"K{i+2}", [p], False)), 256, 640, LDS))
    else:
        ks.append(("k2_kernel", lambda: make_kernel("KB", P, True), 256, 640, LDS))
    hdr = open(os.path.join(os.path.dirname(os.path.abspath(__file__)), "header.txt")).read()
    out = [hdr.rstrip("\n")]
    for (n, f, g, b, lds) in ks:
        out.append(f"; @launch kernel={n} grid=({g},1,1) block=({b},1,1) lds={lds}")
    out.append('.amdgcn_target "amdgcn-amd-amdhsa--gfx950"')
    out.append(".text")
    kds = []
    for (n, f, g, b, lds) in ks:
        lines, nv = f()
        out.append(kernel_text(n, lines, nv))
        kds.append(kd_text(n, nv))
    out.append("CODE_END:")
    out.append("    s_endpgm")
    out.append('.section .rodata,"a"')
    out += kds
    open(path, "w").write("\n".join(out) + "\n")

if __name__ == "__main__":
    path = sys.argv[1] if len(sys.argv) > 1 else f"cdna_kernels/{NAME}.s"
    build(path, os.environ.get("MODE", "split"))
```

```python
import sys, os, struct
sys.path.insert(0, os.path.dirname(os.path.abspath(__file__)))
from asmlib import *

NAME = "adaLN_cond__softmax_full_mha__swiglu_ffn__prompt"
def f2h(x): return hex(struct.unpack('<I', struct.pack('<f', x))[0])

WS_MOD = 0x0
WS_ST1 = 0x4000
WS_EXT = 0x8000
WS_AB = 0xF000
WS_ST2 = 0x10000
WS_FLG = 0x80000
WS_Q = 0x100000
WS_K = 0x300000
WS_V = 0x500000
WS_O = 0x700000
WS_X1 = 0x900000
WS_X1S = 0xB00000
WS_ACT = 0xD00000
WS_SIZE = 0x1400000

KA_X, KA_WQKV, KA_WO, KA_BX, KA_WG, KA_WU, KA_WD, KA_C, KA_WMOD, KA_OUT, KA_DBG, KA_WS = [8 * i for i in range(12)]
LOG2E = 0x3fb8aa3b
NLOG2E = 0xbfb8aa3b

S_X, S_WQKV, S_WO, S_WG, S_WU, S_WD, S_WS, S_OUT = 28, 32, 36, 40, 44, 48, 52, 56
S_WAVE = 60
S_WSP = 62
S_WM = 96
S_KA = 64
def sr(x): return f"s[{x}:{x+3}]"
def r4(x): return f"v[{x}:{x+3}]"
def r2(x): return f"v[{x}:{x+1}]"
def r16(x): return f"v[{x}:{x+15}]"

def srd(a, d, b, nbytes):
    a(f"s_mov_b32 s{d}, s{b}")
    a(f"s_and_b32 s{d+1}, s{b+1}, 0xffff")
    a(f"s_mov_b32 s{d+2}, {hex(nbytes)}")
    a(f"s_mov_b32 s{d+3}, 0x00020000")

def allreduce_add(a, regs, tmps):
    for ror in (1, 2, 4, 8):
        for r in regs:
            a(f"v_add_f32_dpp v{r}, v{r}, v{r} row_ror:{ror} row_mask:0xf bank_mask:0xf")
    for sw in ("v_permlane16_swap_b32", "v_permlane32_swap_b32"):
        for r, t in zip(regs, tmps): a(f"v_mov_b32 v{t}, v{r}")
        for r, t in zip(regs, tmps): a(f"{sw} v{r}, v{t}")
        for r, t in zip(regs, tmps): a(f"v_add_f32 v{r}, v{r}, v{t}")

def bf16r(a, r):
    a(f"v_cvt_pk_bf16_f32 v{r}, v{r}, v{r}")
    a(f"v_lshlrev_b32 v{r}, 16, v{r}")

def ln_finish(a, means, sumsq, outs):
    for m, q in zip(means, sumsq): a(f"v_mul_f32 v{q}, 0x3b000000, v{q}")
    for m, q in zip(means, sumsq): a(f"v_cvt_pk_bf16_f32 v{q}, v{q}, v{m}")
    for m, q in zip(means, sumsq):
        a(f"v_and_b32 v{m}, 0xffff0000, v{q}")
        a(f"v_lshlrev_b32 v{q}, 16, v{q}")
    for m, q in zip(means, sumsq): a(f"v_add_f32 v{q}, 0x3727c5ac, v{q}")
    for q in sumsq: bf16r(a, q)
    for q in sumsq: a(f"v_sqrt_f32 v{q}, v{q}")
    for q in sumsq: bf16r(a, q)
    for q, o in zip(sumsq, outs): a(f"v_rcp_f32 v{o}, v{q}")
    for m, o in zip(means, outs): a(f"v_mul_f32_e64 v{o+1}, -v{m}, v{o}")

STAMP = bool(int(os.environ.get("STAMP", "0")))
WS_STAMP = 0x2000000
NMID = 12
def stamp_start(a):
    if STAMP:
        for i in range(NMID): a(f"s_mov_b32 s{66+2*i}, 0")
        a("s_memrealtime s[90:91]")
def stamp_mid(a, i):
    if STAMP: a(f"s_memrealtime s[{66+2*i}:{67+2*i}]")
def stamp_end(a, kidx, ws_base_sgpr, vt, wait=True):
    if not STAMP: return
    if wait: a("s_waitcnt vmcnt(0)")
    a("s_memrealtime s[92:93]")
    a(f"v_lshrrev_b32 v{vt}, 6, v0")
    a(f"s_lshl_b32 s94, s2, 4")
    a(f"s_add_u32 s94, s94, {kidx*1024*16}")
    a(f"v_add_u32 v{vt}, s94, v{vt}")
    a(f"v_lshlrev_b32 v{vt}, 6, v{vt}")
    a(f"v_add_u32 v{vt}, {WS_STAMP}, v{vt}")
    a("s_waitcnt lgkmcnt(0)")
    a(f"v_mov_b32 v{vt+2}, s90")
    a(f"v_mov_b32 v{vt+3}, s92")
    for i in range(NMID): a(f"v_mov_b32 v{vt+4+i}, s{66+2*i}")
    a("s_getreg_b32 s94, hwreg(HW_REG_XCC_ID)")
    a(f"v_mov_b32 v{vt+16}, s94")
    a("s_getreg_b32 s94, hwreg(HW_REG_HW_ID)")
    a(f"v_mov_b32 v{vt+17}, s94")
    a("s_mov_b64 exec, 1")
    for q in range(4):
        a(f"global_store_dwordx4 v{vt}, v[{vt+2+4*q}:{vt+5+4*q}], s[{ws_base_sgpr}:{ws_base_sgpr+1}] offset:{16*q}")
    a("s_mov_b64 exec, -1")

def prologue(a, endlabel):
    a("s_cmp_ge_u32 s2, 256")
    a(f"s_cbranch_scc1 {endlabel}")
    stamp_start(a)
    a("s_load_dwordx16 s[4:19], s[0:1], 0")
    a("s_load_dwordx8 s[20:27], s[0:1], 64")
    a("v_and_b32 v1, 63, v0")
    a("v_lshrrev_b32 v2, 6, v0")
    a("s_nop 0")
    a(f"v_readfirstlane_b32 s{S_WAVE}, v2")
    a("s_waitcnt lgkmcnt(0)")
    srd(a, S_X, 4, 2048 * 512 * 2)
    srd(a, S_WQKV, 6, 512 * 1536 * 2)
    srd(a, S_WO, 8, 512 * 512 * 2)
    srd(a, S_WG, 12, 512 * 1792 * 2)
    srd(a, S_WU, 14, 512 * 1792 * 2)
    srd(a, S_WD, 16, 1792 * 512 * 2)
    srd(a, S_OUT, 22, 2048 * 512 * 2)
    srd(a, S_WS, 26, WS_SIZE)
    a(f"s_mov_b64 s[{S_WSP}:{S_WSP+1}], s[26:27]")
    srd(a, S_WM, 20, 512 * 3072 * 2)
    a(f"s_mov_b64 s[{S_KA}:{S_KA+1}], s[24:25]")
```

```python
from common import *
import phases

NMOD = 96
NWG = NMOD + 256
def k1():
    a = Asm()
    a(f"s_cmp_ge_u32 s2, {NWG}")
    a("s_cbranch_scc1 K1_END")
    stamp_start(a)
    a(f"s_load_dwordx4 s[4:7], s[0:1], {KA_X}")
    a(f"s_load_dwordx4 s[8:11], s[0:1], {KA_C}")
    a(f"s_load_dwordx2 s[34:35], s[0:1], {KA_WS}")
    a("s_and_b32 s36, s2, 7")
    a("s_mul_i32 s36, s36, 12")
    a("s_lshr_b32 s37, s2, 3")
    a("s_add_u32 s36, s36, s37")
    a("v_and_b32 v1, 3, v0")
    a("v_lshrrev_b32 v2, 2, v0")
    a("v_lshlrev_b32 v3, 1, v2")
    a("v_mul_u32_u24 v4, 6144, v2")
    a("v_lshl_add_u32 v4, v1, 4, v4")
    a("s_lshl_b32 s3, s36, 6")
    a("v_add_u32 v4, s3, v4")
    a("s_waitcnt lgkmcnt(0)")
    srd(a, 12, 4, 2048 * 512 * 2)
    srd(a, 16, 8, 1024)
    srd(a, 20, 10, 512 * 3072 * 2)
    srd(a, 24, 34, WS_SIZE)
    srd(a, 40, 6, 512 * 1536 * 2)
    a(f"s_cmp_ge_u32 s2, {NMOD}")
    a("s_cbranch_scc1 K1_STATS")
    stamp_mid(a, 0)
    for i in range(8):
        a(f"s_mov_b32 s28, {i*393216}")
        a(f"buffer_load_dwordx4 v[{16+4*i}:{19+4*i}], v4, s[20:23], s28 offen", f"w{i}")
        if i == 0:
            for k in range(8):
                a(f"buffer_load_ushort v{8+k}, v3, s[16:19], 0 offen offset:{128*k}", "c")
    for i in range(8):
        a(f"v_mov_b32 v{48+i}, 0")
    stamp_mid(a, 1)
    a.wait_vm("c")
    stamp_mid(a, 2)
    for i in range(8): a(f"v_lshlrev_b32 v{8+i}, 16, v{8+i}")
    for i in range(8): a(f"v_mul_f32 v{56+i}, {hex(NLOG2E)}, v{8+i}")
    for i in range(8): a(f"v_exp_f32 v{56+i}, v{56+i}")
    for i in range(8): a(f"v_add_f32 v{56+i}, 1.0, v{56+i}")
    for i in range(8): a(f"v_rcp_f32 v{56+i}, v{56+i}")
    for i in range(8): a(f"v_mul_f32 v{8+i}, v{8+i}, v{56+i}")
    for i in range(8): bf16r(a, 8 + i)
    for i in range(8):
        a.wait_vm(f"w{i}")
        if i in (1, 4, 7): stamp_mid(a, 3 + i // 3)
        for d in range(4):
            w = 16 + 4 * i + d
            a(f"v_lshlrev_b32 v{56+2*d}, 16, v{w}")
            a(f"v_and_b32 v{57+2*d}, 0xffff0000, v{w}")
        for d in range(8):
            a(f"v_fmac_f32 v{48+d}, v{8+i}, v{56+d}")
    for ror in (4, 8):
        for d in range(8):
            a(f"v_add_f32_dpp v{48+d}, v{48+d}, v{48+d} row_ror:{ror} row_mask:0xf bank_mask:0xf")
    a("v_lshrrev_b32 v5, 4, v0")
    a("v_lshlrev_b32 v5, 7, v5")
    a("v_lshl_add_u32 v5, v1, 5, v5")
    a("s_mov_b32 s30, 0x000f000f")
    a("s_mov_b32 s31, 0x000f000f")
    a("s_mov_b64 exec, s[30:31]")
    a("ds_write_b128 v5, v[48:51]")
    a("ds_write_b128 v5, v[52:55] offset:16")
    a("s_mov_b64 exec, -1")
    a("s_waitcnt lgkmcnt(0)")
    a("s_barrier")
    stamp_mid(a, 6)
    a("v_cmp_gt_u32 vcc, 32, v0")
    a("s_and_saveexec_b64 s[32:33], vcc")
    a("s_cbranch_execz K1_END")
    a("v_lshlrev_b32 v5, 2, v0")
    for i in range(16):
        a(f"ds_read_b32 v{16+i}, v5 offset:{128*i}")
    a("s_waitcnt lgkmcnt(0)")
    for st in (8, 4, 2, 1):
        for i in range(st):
            a(f"v_add_f32 v{16+i}, v{16+i}, v{16+i+st}")
    bf16r(a, 16)
    a("s_lshr_b32 s28, s36, 4")
    a("s_cmp_eq_u32 s28, 1")
    a("s_cselect_b32 s29, 1, 0")
    a("s_cmp_eq_u32 s28, 4")
    a("s_cselect_b32 s29, 1, s29")
    a("s_cmp_eq_u32 s29, 0")
    a("s_cbranch_scc1 K1_NOADD")
    a("v_add_f32 v16, 1.0, v16")
    bf16r(a, 16)
    a.label("K1_NOADD")
    a("s_lshl_b32 s28, s36, 7")
    a(f"buffer_store_dword v16, v5, s[24:27], s28 offen offset:{WS_MOD}")
    a("s_lshr_b32 s28, s36, 4")
    a("s_lshl_b32 s29, s28, 2")
    a("s_lshr_b32 s28, 0x701723, s29")
    a("s_and_b32 s28, s28, 7")
    a("s_cmp_eq_u32 s28, 7")
    a("s_cbranch_scc1 K1_NOAB")
    a("s_lshl_b32 s28, s28, 10")
    a("s_and_b32 s29, s36, 15")
    a("s_lshl_b32 s29, s29, 6")
    a("s_add_u32 s28, s28, s29")
    a(f"s_add_u32 s28, s28, {WS_AB}")
    a("v_lshlrev_b32 v5, 1, v0")
    a("buffer_store_short_d16_hi v16, v5, s[24:27], s28 offen")
    a.label("K1_NOAB")
    stamp_end(a, 0, 34, 24)
    a("s_endpgm")
    a.label("K1_STATS")
    a.vm = []
    a(f"s_sub_u32 s29, s2, {NMOD}")
    a("s_lshr_b32 s30, s29, 3")
    a("s_bfe_u32 s31, s29, 0x20001")
    a("s_lshl_b32 s31, s31, 5")
    a("s_add_u32 s31, s31, s30")
    a("s_lshl_b32 s28, s31, 14")
    if os.environ.get("CODEPF", "1") == "1":
        a("s_cmp_eq_u32 s30, 0")
        a("s_cbranch_scc0 K1_NOCODE")
        a("s_getpc_b64 s[44:45]")
        a.label("K1_PC")
        a("s_sub_u32 s44, s44, K1_PC-k1_kernel")
        a("s_subb_u32 s45, s45, 0")
        a("v_lshlrev_b32 v6, 7, v0")
        a("v_min_u32 v6, CODE_END-k1_kernel-4, v6")
        a("global_load_dword v68, v6, s[44:45]", "pf")
        a.label("K1_NOCODE")
    a("s_lshr_b32 s44, s29, 3")
    a("s_cmp_eq_u32 s44, 2")
    a("s_cbranch_scc0 K1_NOZ")
    a("v_mov_b32 v8, 0")
    a(f"v_lshlrev_b32 v6, {2+phases.FSH}, v0")
    a("s_and_b32 s44, s29, 7")
    a(f"s_lshl_b32 s44, s44, {10+phases.FSH}")
    a(f"s_add_u32 s44, s44, {WS_FLG}")
    a("buffer_store_dword v8, v6, s[24:27], s44 offen")
    a("s_nop 1")
    a.label("K1_NOZ")
    G = int(os.environ.get("TLBPF", "16"))
    if G:
        a("s_cmp_eq_u32 s30, 1")
        a("s_cbranch_scc0 K1_NOTLB")
        a(f"s_load_dwordx2 s[46:47], s[0:1], {KA_WO}")
        a(f"s_load_dwordx4 s[48:51], s[0:1], {KA_WG}")
        a(f"s_load_dwordx2 s[52:53], s[0:1], {KA_WD}")
        a(f"s_load_dwordx2 s[54:55], s[0:1], {KA_OUT}")
        a(f"v_lshlrev_b32 v6, {G}, v0")
        for q in range((WS_SIZE + (256 << G) - 1) // (256 << G)):
            a(f"s_mov_b32 s44, {q * (256 << G)}")
            a(f"buffer_load_dword v68, v6, s[24:27], s44 offen")
        a("s_waitcnt lgkmcnt(0)")
        for (b, n) in ((46, 512*512*2), (48, 512*1792*2), (50, 512*1792*2), (52, 1792*512*2), (54, 2048*512*2)):
            srd(a, 56, b, n)
            for q in range((n + (256 << G) - 1) // (256 << G)):
                a(f"s_mov_b32 s44, {q * (256 << G)}")
                a(f"buffer_load_dword v69, v6, s[56:59], s44 offen")
        a.label("K1_NOTLB")
    a("v_lshrrev_b32 v1, 6, v0")
    a("v_and_b32 v2, 63, v0")
    a("v_lshlrev_b32 v3, 12, v1")
    a("v_lshl_add_u32 v3, v2, 4, v3")
    for r in range(4):
        a(f"buffer_load_dwordx4 v[{8+4*r}:{11+4*r}], v3, s[12:15], s28 offen offset:{1024*r}", f"x{r}")
    a("v_mul_u32_u24 v4, 5462, v0")
    a("v_lshrrev_b32 v4, 16, v4")
    a("v_mul_u32_u24 v5, 12, v4")
    a("v_sub_u32 v5, v0, v5")
    a("v_mul_u32_u24 v4, 3072, v4")
    a("v_lshrrev_b32 v6, 2, v5")
    a("v_lshl_add_u32 v4, v6, 10, v4")
    a("v_and_b32 v6, 3, v5")
    a("v_lshl_add_u32 v4, v6, 7, v4")
    a("v_cmp_gt_u32 vcc, 192, v0")
    a("v_mov_b32 v6, 0x7ff00000")
    a("v_cndmask_b32 v4, v6, v4, vcc")
    a("s_mul_i32 s32, s30, 16*3072")
    a("s_and_b32 s33, s29, 1")
    a("s_lshl_b32 s36, s33, 9")
    a("s_add_u32 s32, s32, s36")
    a("buffer_load_dword v7, v4, s[40:43], s32 offen", "pf")
    a("s_cmp_eq_u32 s33, 0")
    a("s_cbranch_scc0 K1_AUXEND")
    for r in range(4):
        a.wait_vm(f"x{r}")
        for d in range(4):
            a(f"v_lshlrev_b32 v{24+8*r+2*d}, 16, v{8+4*r+d}")
            a(f"v_and_b32 v{25+8*r+2*d}, 0xffff0000, v{8+4*r+d}")
        b = 24 + 8 * r
        a(f"v_add_f32 v{56+r}, v{b}, v{b+1}")
        a(f"v_add_f32 v{60+r}, v{b+2}, v{b+3}")
        a(f"v_add_f32 v{56+r}, v{56+r}, v{b+4}")
        a(f"v_add_f32 v{60+r}, v{60+r}, v{b+5}")
        a(f"v_add_f32 v{56+r}, v{56+r}, v{b+6}")
        a(f"v_add_f32 v{60+r}, v{60+r}, v{b+7}")
        a(f"v_add_f32 v{56+r}, v{56+r}, v{60+r}")
    allreduce_add(a, [56, 57, 58, 59], [60, 61, 62, 63])
    for r in range(4):
        a(f"v_mul_f32 v{56+r}, 0x3b000000, v{56+r}")
    for r in range(4):
        b = 24 + 8 * r
        for d in range(8):
            a(f"v_sub_f32 v{b+d}, v{b+d}, v{56+r}")
        a(f"v_mul_f32 v{64+r}, v{b}, v{b}")
        for d in range(1, 8):
            a(f"v_fmac_f32 v{64+r}, v{b+d}, v{b+d}")
    allreduce_add(a, [64, 65, 66, 67], [60, 61, 62, 63])
    ln_finish(a, [56, 57, 58, 59], [64, 65, 66, 67], [(8 + 2 * r) for r in range(4)])
    a("s_lshl_b32 s28, s31, 7")
    a(f"s_add_u32 s28, s28, {WS_ST1}")
    a("v_lshlrev_b32 v3, 5, v1")
    a("s_mov_b64 exec, 1")
    a("buffer_store_dwordx4 v[8:11], v3, s[24:27], s28 offen")
    a("buffer_store_dwordx4 v[12:15], v3, s[24:27], s28 offen offset:16")
    a("s_mov_b64 exec, -1")
    a.label("K1_AUXEND")
    stamp_end(a, 0, 34, 24)
    a.label("K1_END")
    a("s_endpgm")
    return fix_hazards(a.lines), 72

KERNEL = ("k1_kernel", k1, NWG, 256, 2048)
```

```python
from common import *

NV = 168
SC = ""
FUSED = False
SLEEP = int(os.environ.get("SLEEP", "4"))
POLLF = os.environ.get("POLLF", "sc1")
ONE = False

def F2(hg): return WS_FLG + hg * 128
FSH = int(os.environ.get("FSH", "5"))
F2B, F3B, F4B, F5B, FEB = 0, 1024, 2048, 4096, 6144
FLG_BYTES = 8192

_uid = [0]
def uid(p):
    _uid[0] += 1
    return f"{p}_{_uid[0]}"

def poll(c, s_off, n, vt, st=None):
    if not FUSED: return
    _poll(c, s_off, n, vt)
    if st is not None: stamp_mid(c, st)

def _poll(c, s_off, n, vt):
    L = uid("POLL"); E = uid("POLLE")
    c(f"s_lshl_b32 s{s_off}, s{s_off}, {FSH}")
    c(f"s_add_u32 s{s_off}, s{s_off}, {WS_FLG}")
    c(f"v_min_u32 v{vt}, {n-1}, v1")
    c(f"v_lshlrev_b32 v{vt}, {2+FSH}, v{vt}")
    c("s_mov_b32 s95, 0x40000")
    c.label(L)
    c(f"buffer_load_dword v{vt+1}, v{vt}, {sr(S_WS)}, s{s_off} offen {POLLF}")
    c("s_waitcnt vmcnt(0)")
    c(f"v_cmp_eq_u32 vcc, 0, v{vt+1}")
    c("s_sub_u32 s95, s95, 1")
    c("s_cmp_eq_u32 s95, 0")
    c(f"s_cbranch_scc1 {E}")
    c(f"s_cbranch_vccz {E}")
    c(f"s_sleep {SLEEP}")
    c("s_branch " + L)
    c.label(E)

def signal(c, s_off, vt, st=None):
    if not FUSED: return
    if st is not None: stamp_mid(c, st)
    c(f"s_lshl_b32 s{s_off}, s{s_off}, {FSH}")
    c(f"s_add_u32 s{s_off}, s{s_off}, {WS_FLG}")
    c(f"v_mov_b32 v{vt}, 0")
    c(f"v_mov_b32 v{vt+1}, 1")
    c("s_mov_b64 exec, 1")
    c(f"buffer_store_dword v{vt+1}, v{vt}, {sr(S_WS)}, s{s_off} offen sc1")
    c("s_mov_b64 exec, -1")

def barriers(c, n):
    if n <= 3:
        for _ in range(n): c("s_barrier")
        return
    L = uid("BAR")
    c(f"s_mov_b32 s61, {n}")
    c.label(L)
    c("s_barrier")
    c("s_sub_u32 s61, s61, 1")
    c("s_cmp_lg_u32 s61, 0")
    c(f"s_cbranch_scc1 {L}")

def finish(c, kidx, endlabel, vt=8):
    if FUSED:
        c(f"s_branch {endlabel}")
    else:
        stamp_end(c, kidx, S_WSP, vt)
        c("s_endpgm")


F1B = 7168

def silu_frags(c, lds_tmp):
    c(f"s_load_dwordx2 s[8:9], s[0:1], {KA_C}")
    c("v_lshlrev_b32 v20, 4, v1")
    c("s_waitcnt lgkmcnt(0)")
    c("global_load_dwordx4 v[96:99], v20, s[8:9]", "c")
    return
def silu_frags2(c, lds_tmp):
    c.wait_vm("c")
    for d in range(4):
        c(f"v_lshlrev_b32 v{100+2*d}, 16, v{96+d}")
        c(f"v_and_b32 v{101+2*d}, 0xffff0000, v{96+d}")
    for i in range(8): c(f"v_mul_f32 v{108+i}, {hex(NLOG2E)}, v{100+i}")
    for i in range(8): c(f"v_exp_f32 v{108+i}, v{108+i}")
    for i in range(8): c(f"v_add_f32 v{108+i}, 1.0, v{108+i}")
    for i in range(8): c(f"v_rcp_f32 v{108+i}, v{108+i}")
    for i in range(8): c(f"v_mul_f32 v{100+i}, v{100+i}, v{108+i}")
    for d in range(4): c(f"v_cvt_pk_bf16_f32 v{96+d}, v{100+2*d}, v{101+2*d}")
    c(f"v_add_u32 v20, {lds_tmp}, v20")
    c("ds_write_b128 v20, v[96:99]")
    c("v_lshrrev_b32 v21, 4, v1")
    c("v_lshlrev_b32 v21, 4, v21")
    c(f"v_add_u32 v21, {lds_tmp}, v21")
    c("s_waitcnt lgkmcnt(0)")
    for i in range(16): c(f"ds_read_b128 {r4(32+4*i)}, v21 offset:{64*i}")

def colsum_addr(c, stride, lds):
    c("v_lshrrev_b32 v9, 1, v1")
    c(f"v_mul_u32_u24 v9, {stride}, v9")
    c("v_and_b32 v10, 1, v1")
    c("v_lshl_add_u32 v9, v10, 4, v9")
    c("v_lshrrev_b32 v11, 4, v1")
    c("v_bfe_u32 v13, v1, 2, 2")
    c("v_lshl_add_u32 v13, v11, 3, v13")
    c("v_lshlrev_b32 v13, 5, v13")
    c("v_and_b32 v14, 3, v1")
    c("v_lshl_add_u32 v13, v14, 3, v13")
    c(f"v_add_u32 v13, {lds}, v13")
    for r in range(4): c(f"v_mov_b32 v{16+r}, 0")
def colsum_dma(c, srdreg, s_off, stride, lds, k0, n):
    for i in range(n):
        c(f"s_mov_b32 m0, {lds + i*1024}")
        c(f"s_add_u32 s11, s{s_off}, {(k0+i)*32*stride}")
        c(f"buffer_load_dwordx4 v9, {sr(srdreg)}, s11 offen lds", "cw")
def colsum_mma(c, k0, i0):
    for i in range(8):
        c(f"ds_read_b64_tr_b16 v[{96+4*i}:{97+4*i}], v13 offset:{(i0+i)*1024}")
        c(f"ds_read_b64_tr_b16 v[{98+4*i}:{99+4*i}], v13 offset:{(i0+i)*1024+128}")
    c("s_waitcnt lgkmcnt(0)")
    for i in range(8):
        c(f"v_mfma_f32_16x16x32_bf16 v[16:19], {r4(32+4*(k0+i))}, {r4(96+4*i)}, v[16:19]")

def mod_store(c, s_blk):
    L1 = uid("MODA"); L2 = uid("MODB")
    bf16r(c, 16)
    c(f"s_lshr_b32 s8, s{s_blk}, 5")
    c("s_lshl_b32 s9, s8, 2")
    c("s_lshr_b32 s10, 0x010010, s9")
    c("s_and_b32 s10, s10, 1")
    c("s_cmp_eq_u32 s10, 0")
    c(f"s_cbranch_scc1 {L1}")
    c("v_add_f32 v16, 1.0, v16")
    bf16r(c, 16)
    c.label(L1)
    c("v_lshlrev_b32 v10, 2, v1")
    c("v_lshlrev_b32 v11, 1, v1")
    c(f"s_lshl_b32 s10, s{s_blk}, 6")
    c("s_mov_b64 exec, 0xffff")
    c(f"buffer_store_dword v16, v10, {sr(S_WS)}, s10 offen offset:{WS_MOD} sc1")
    c("s_lshr_b32 s8, 0x701723, s9")
    c("s_and_b32 s8, s8, 7")
    c("s_cmp_eq_u32 s8, 7")
    c(f"s_cbranch_scc1 {L2}")
    c("s_lshl_b32 s8, s8, 10")
    c(f"s_and_b32 s9, s{s_blk}, 31")
    c("s_lshl_b32 s9, s9, 5")
    c("s_add_u32 s8, s8, s9")
    c(f"s_add_u32 s8, s8, {WS_AB}")
    c(f"buffer_store_short_d16_hi v16, v11, {sr(S_WS)}, s8 offen sc1")
    c.label(L2)
    c("s_mov_b64 exec, -1")

def poll_srd(c, srdreg, s_off, n, vt, st=None):
    L = uid("POLL"); E = uid("POLLE")
    c(f"v_lshlrev_b32 v{vt}, 2, v1")
    c(f"v_min_u32 v{vt}, {4*(n-1)}, v{vt}")
    c("s_mov_b32 s95, 0x40000")
    c.label(L)
    c(f"buffer_load_dword v{vt+1}, v{vt}, {sr(srdreg)}, {s_off} offen {POLLF}")
    c("s_waitcnt vmcnt(0)")
    c(f"v_cmp_eq_u32 vcc, 0, v{vt+1}")
    c("s_sub_u32 s95, s95, 1")
    c("s_cmp_eq_u32 s95, 0")
    c(f"s_cbranch_scc1 {E}")
    c(f"s_cbranch_vccz {E}")
    c(f"s_sleep {SLEEP}")
    c("s_branch " + L)
    c.label(E)
    if st is not None: stamp_mid(c, st)

def p2(a):
    A_STG = 8192; B_BASE = 65536; B_SLOT = 24576; NSB = 4
    XR, AB, TMP, ACC, FR = 8, 52, 68, 80, [104, 124]
    SCR = B_BASE + 3 * B_SLOT
    END = "P2_END"
    a("s_and_b32 s25, s2, 1")
    a("s_lshl_b32 s25, s25, 2")
    a("s_bfe_u32 s26, s2, 0x20003")
    a("s_add_u32 s25, s25, s26")
    a("s_bfe_u32 s26, s2, 0x20001")
    a("s_lshl_b32 s26, s26, 3")
    a("s_lshr_b32 s27, s2, 5")
    a("s_add_u32 s26, s26, s27")
    a(f"s_cmp_ge_u32 s{S_WAVE}, 8")
    a("s_cbranch_scc1 P2_LOADER")
    a("v_lshlrev_b32 v42, 4, v1")
    a("s_lshl_b32 s27, s26, 16")
    a(f"s_lshl_b32 s20, s{S_WAVE}, 13")
    a("s_add_u32 s27, s27, s20")
    a("s_add_u32 s20, s27, 4096")
    if ONE:
        srd(a, 4, S_KA, 256)
        a("s_barrier")
    else:
        a("s_lshr_b32 s21, s27, 7")
        a(f"s_add_u32 s21, s21, {WS_ST1}")
        a(f"s_buffer_load_dwordx16 s[4:19], {sr(S_WS)}, s21")
        a(f"s_mov_b32 s22, {WS_AB + 2048}")
        a(f"buffer_load_dwordx4 {r4(FR[0])}, v42, {sr(S_WS)}, s22 offen", "ab")
        a(f"buffer_load_dwordx4 {r4(FR[0]+4)}, v42, {sr(S_WS)}, s22 offen offset:1024", "ab")
    for j in range(8):
        a(f"buffer_load_dwordx4 {r4(XR+4*j)}, v42, {sr(S_X)}, s{27 if j < 4 else 20} offen offset:{1024*(j%4)}", f"x{j}")
    if ONE:
        a(f"v_mov_b32 v49, {SCR + 20480}")
        a("v_mov_b32 v50, 0")
        a("ds_write_b32 v49, v50")
        a("ds_write_b32 v49, v50 offset:4")
        a("s_waitcnt lgkmcnt(0)")
    a("s_barrier")
    a("v_lshrrev_b32 v54, 3, v1")
    a("v_lshlrev_b32 v43, 13, v54")
    a("v_and_b32 v55, 7, v1")
    a(f"s_and_b32 s23, s{S_WAVE}, 1")
    a("s_lshl_b32 s22, s23, 2")
    a("v_xor_b32 v55, s22, v55")
    a("v_lshl_add_u32 v43, v55, 4, v43")
    a(f"s_lshl_b32 s22, s{S_WAVE}, 10")
    a("v_add_u32 v43, s22, v43")
    for q in range(1, 4): a(f"v_xor_b32 v{43+q}, {q*16}, v43")
    a("v_and_b32 v54, 15, v1")
    a("v_lshrrev_b32 v55, 4, v1")
    a("v_bfe_u32 v56, v54, 1, 3")
    a("v_xor_b32 v56, v56, v55")
    a("v_lshlrev_b32 v40, 7, v54")
    a("v_lshl_add_u32 v40, v56, 4, v40")
    a("s_lshl_b32 s22, s23, 12")
    a("v_add_u32 v40, s22, v40")
    a("v_xor_b32 v41, 64, v40")
    a("v_bfe_u32 v56, v1, 2, 2")
    a("v_lshl_add_u32 v56, v55, 3, v56")
    a("v_mul_u32_u24 v47, 384, v56")
    a("v_bfe_u32 v57, v1, 3, 2")
    a(f"s_lshr_b32 s24, s{S_WAVE}, 1")
    a("v_xor_b32 v57, s24, v57")
    a("v_lshl_add_u32 v47, v57, 5, v47")
    a("v_and_b32 v58, 3, v1")
    a("v_lshl_add_u32 v47, v58, 3, v47")
    a(f"v_add_u32 v47, {B_BASE}, v47")
    a(f"v_add_u32 v48, {2*B_SLOT}, v47")
    if ONE:
        XF = 80
        S1, S2, T1 = 144, 152, 160
        for j in range(8):
            x = XR + 4 * j; f = XF + 8 * j
            a.wait_vm(f"x{j}")
            for d in range(4):
                a(f"v_lshlrev_b32 v{f+2*d}, 16, v{x+d}")
                a(f"v_and_b32 v{f+1+2*d}, 0xffff0000, v{x+d}")
            a(f"v_add_f32 v{S1+j}, v{f}, v{f+1}")
            a(f"v_add_f32 v{T1+j}, v{f+2}, v{f+3}")
            a(f"v_add_f32 v{S1+j}, v{S1+j}, v{f+4}")
            a(f"v_add_f32 v{T1+j}, v{T1+j}, v{f+5}")
            a(f"v_add_f32 v{S1+j}, v{S1+j}, v{f+6}")
            a(f"v_add_f32 v{T1+j}, v{T1+j}, v{f+7}")
            a(f"v_add_f32 v{S1+j}, v{S1+j}, v{T1+j}")
        allreduce_add(a, list(range(S1, S1 + 8)), list(range(T1, T1 + 8)))
        for j in range(8): a(f"v_mul_f32 v{S1+j}, 0x3b000000, v{S1+j}")
        for j in range(8):
            f = XF + 8 * j
            for d in range(8): a(f"v_sub_f32 v{f+d}, v{f+d}, v{S1+j}")
            a(f"v_mul_f32 v{S2+j}, v{f}, v{f}")
            for d in range(1, 8): a(f"v_fmac_f32 v{S2+j}, v{f+d}, v{f+d}")
        allreduce_add(a, list(range(S2, S2 + 8)), list(range(T1, T1 + 8)))
        for j in range(8): a(f"v_mov_b32 v{T1+j}, v{S1+j}")
        ln_finish(a, list(range(S1, S1 + 8)), list(range(S2, S2 + 8)), [XR + 2 * j for j in range(8)])
        for j in range(8):
            a(f"v_sub_f32 v{T1+j}, v{T1+j}, v{S1+j}")
            a(f"v_mul_f32 v{T1+j}, v{T1+j}, v{XR+2*j}")
        for j in range(8):
            f = XF + 8 * j
            for d in range(8): a(f"v_fma_f32 v{f+d}, v{f+d}, v{XR+2*j}, v{T1+j}")
        stamp_mid(a, 10)
        a(f"s_cmp_eq_u32 s{S_WAVE}, 0")
        a("s_cbranch_scc0 P2_WAITL")
        if os.environ.get("F1MODE", "last") == "last":
            a("s_mov_b32 s22, 128")
            poll_srd(a, 4, "s22", 1, 24, 11)
        else:
            poll_srd(a, 4, "0", 64, 24, 11)
        a(f"s_mov_b32 s22, {WS_AB + 2048}")
        a(f"s_mov_b32 m0, {SCR + 18432}")
        a("s_nop 0")
        a(f"buffer_load_dwordx4 v42, {sr(S_WS)}, s22 offen sc1 lds")
        a(f"buffer_load_dwordx4 v42, {sr(S_WS)}, s22 offen offset:1024 sc1 lds")
        a("v_mov_b32 v24, 1")
        a("s_waitcnt vmcnt(0)")
        a("ds_write_b32 v49, v24")
        a.label("P2_WAITL")
        a("s_mov_b32 s95, 0x400000")
        a.label("P2_WAITL2")
        a("ds_read_b32 v24, v49")
        a("s_waitcnt lgkmcnt(0)")
        a("v_cmp_eq_u32 vcc, 1, v24")
        a("s_sub_u32 s95, s95, 1")
        a("s_cmp_eq_u32 s95, 0")
        a("s_cbranch_scc1 P2_GOTL")
        a("s_cbranch_vccnz P2_GOTL")
        a("s_sleep 1")
        a("s_branch P2_WAITL2")
        a.label("P2_GOTL")
        a(f"v_add_u32 v50, {SCR + 18432}, v42")
        a("ds_read_b128 v[24:27], v50")
        a("ds_read_b128 v[28:31], v50 offset:1024")
        a("s_waitcnt lgkmcnt(0)")
        for q in range(8):
            a(f"v_lshlrev_b32 v{AB+2*q}, 16, v{24+q}")
            a(f"v_and_b32 v{AB+2*q+1}, 0xffff0000, v{24+q}")
        for j in range(8):
            f = XF + 8 * j; x = XR + 4 * (j & 3)
            for d in range(8): a(f"v_fma_f32 v{f+d}, v{f+d}, v{AB+d}, v{AB+8+d}")
            for d in range(4): a(f"v_cvt_pk_bf16_f32 v{x+d}, v{f+2*d}, v{f+1+2*d}")
            a(f"ds_write_b128 v{43 + (j>>1)}, {r4(x)} offset:{j*128}")
        for r in range(ACC, ACC + 24): a(f"v_mov_b32 v{r}, 0")
    else:
        for r in range(ACC, ACC + 24): a(f"v_mov_b32 v{r}, 0")
        a.wait_vm("ab", "lgkmcnt(0)")
        for q in range(8):
            a(f"v_lshlrev_b32 v{AB+2*q}, 16, v{FR[0]+q}")
            a(f"v_and_b32 v{AB+2*q+1}, 0xffff0000, v{FR[0]+q}")
        if not FUSED: stamp_mid(a, 0)
        for j in range(8):
            x = XR + 4 * j
            a.wait_vm(f"x{j}")
            a(f"v_mov_b32 v3, s{5+2*j}")
            for d in range(4):
                a(f"v_lshlrev_b32 v{TMP+2*d}, 16, v{x+d}")
                a(f"v_and_b32 v{TMP+1+2*d}, 0xffff0000, v{x+d}")
            for d in range(8): a(f"v_fma_f32 v{TMP+d}, v{TMP+d}, s{4+2*j}, v3")
            for d in range(8): a(f"v_fma_f32 v{TMP+d}, v{TMP+d}, v{AB+d}, v{AB+8+d}")
            for d in range(4): a(f"v_cvt_pk_bf16_f32 v{x+d}, v{TMP+2*d}, v{TMP+1+2*d}")
            a(f"ds_write_b128 v{43 + (j>>1)}, {r4(x)} offset:{j*128}")
    def read_list(s):
        c, ks = divmod(s, 2)
        F = FR[s & 1]
        sb = c % NSB
        vb = 47 + sb // 2
        ob = (sb % 2) * B_SLOT + ks * 32 * 384
        A = [f"ds_read_b128 {r4(F+4*tt)}, v{40+ks} offset:{c*A_STG + tt*2048}" for tt in range(2)]
        B = []
        for seg in range(3):
            r = F + 8 + seg * 4
            B.append(f"ds_read_b64_tr_b16 v[{r}:{r+1}], v{vb} offset:{ob + seg*128}")
            B.append(f"ds_read_b64_tr_b16 v[{r+2}:{r+3}], v{vb} offset:{ob + seg*128 + 4*384}")
        return [A[0], B[0], B[1], A[1], B[2], B[3], B[4], B[5]]
    def mf_list(s):
        F = FR[s & 1]
        L = []
        for seg in range(3):
            for tt in range(2):
                A = F + tt * 4; B = F + 8 + seg * 4; D = ACC + seg * 8 + tt * 4
                need = max([3, 6, 8][seg], [1, 4][tt])
                if seg < 2: L.append((f"v_mfma_f32_16x16x32_bf16 {r4(D)}, {r4(B)}, {r4(A)}, {r4(D)}", need))
                else: L.append((f"v_mfma_f32_16x16x32_bf16 {r4(D)}, {r4(A)}, {r4(B)}, {r4(D)}", need))
        return L
    a("s_waitcnt lgkmcnt(0)")
    a("s_barrier")
    stamp_mid(a, 1 if not FUSED else 0)
    for l in read_list(0): a(l)
    NR = 8
    for s in range(16):
        c, ks = divmod(s, 2)
        last = s == 15
        R = read_list(s + 1) if not last else []
        done = 0
        if ks == 1 and not last:
            a("s_waitcnt lgkmcnt(0)")
            a("s_barrier")
            done = NR
        issued = 0
        for idx, (txt, need) in enumerate(mf_list(s)):
            if need > done:
                a(f"s_waitcnt lgkmcnt({min(15, NR - need + issued)})")
                done = need
            a(txt)
            tgt = min(len(R), 2 * (idx + 1))
            while issued < tgt:
                a(R[issued]); issued += 1
    stamp_mid(a, 3 if not FUSED else 1)
    a("s_lshl_b32 s20, s25, 2")
    a("s_add_u32 s20, s20, s24")
    a("s_lshl_b32 s20, s20, 16")
    a("s_lshl_b32 s21, s26, 11")
    a("s_add_u32 s20, s20, s21")
    a("s_lshl_b32 s21, s23, 10")
    a("s_add_u32 s20, s20, s21")
    a(f"s_add_u32 s4, s20, {WS_Q}")
    a(f"s_add_u32 s5, s20, {WS_K}")
    a(f"s_add_u32 s6, s20, {WS_V}")
    a("v_and_b32 v54, 15, v1")
    a("v_lshrrev_b32 v55, 4, v1")
    a("v_lshlrev_b32 v56, 4, v54")
    a("v_lshrrev_b32 v58, 1, v55")
    a("v_lshl_add_u32 v56, v58, 9, v56")
    a("v_and_b32 v58, 1, v55")
    a("v_lshl_add_u32 v56, v58, 3, v56")
    a("v_lshlrev_b32 v57, 4, v54")
    a("v_lshl_add_u32 v57, v58, 8, v57")
    a("v_lshrrev_b32 v58, 1, v55")
    a("v_lshl_add_u32 v57, v58, 3, v57")
    qs = f2h(0.25 * 1.4426950408889634)
    for r in range(ACC, ACC + 8): a(f"v_mul_f32 v{r}, {qs}, v{r}")
    for seg in (1, 2, 0):
        for tt in range(2):
            D = ACC + seg * 8 + tt * 4
            P = 8 + (seg * 2 + tt) * 2
            a(f"v_cvt_pk_bf16_f32 v{P}, v{D}, v{D+1}")
            a(f"v_cvt_pk_bf16_f32 v{P+1}, v{D+2}, v{D+3}")
            a(f"buffer_store_dwordx2 v[{P}:{P+1}], v{56 if seg < 2 else 57}, {sr(S_WS)}, s{4+seg} offen offset:{tt*(256 if seg < 2 else 512)} {SC}")
    if FUSED:
        a("s_waitcnt vmcnt(0)")
        a("s_barrier")
    finish(a, 1, END, 120)
    c = a
    c.label("P2_LOADER")
    c("s_setprio 3")
    c.vm = []
    if ONE:
        c(f"s_cmp_eq_u32 s{S_WAVE}, 9")
        c("s_cbranch_scc0 P2_NOTOUCH")
        c("v_lshrrev_b32 v4, 1, v1")
        c("v_mul_u32_u24 v4, 6144, v4")
        c("v_and_b32 v5, 1, v1")
        c("v_lshl_add_u32 v4, v5, 7, v4")
        c("s_lshr_b32 s20, s2, 3")
        c("s_mul_i32 s20, s20, 16*6144")
        c("s_and_b32 s21, s2, 7")
        c("s_lshl_b32 s21, s21, 8")
        c("s_add_u32 s20, s20, s21")
        c("s_mov_b64 exec, 0xffffffff")
        c(f"buffer_load_dword v30, v4, {sr(S_WM)}, s20 offen")
        c("s_mov_b64 exec, -1")
        c.label("P2_NOTOUCH")
    c(f"s_sub_u32 s23, s{S_WAVE}, 8")
    for ii in range(3):
        v = 10 + ii
        c(f"v_add_u32 v4, {64*ii}, v1")
        c("v_mul_u32_u24 v5, 2731, v4")
        c("v_lshrrev_b32 v5, 16, v5")
        c("v_mul_u32_u24 v6, 24, v5")
        c("v_sub_u32 v6, v4, v6")
        c("v_lshrrev_b32 v7, 3, v6")
        c("v_bfe_u32 v8, v6, 1, 2")
        c("v_bfe_u32 v9, v5, 1, 1")
        c("v_lshl_add_u32 v9, s23, 1, v9")
        c("v_xor_b32 v8, v8, v9")
        c("v_and_b32 v6, 1, v6")
        c(f"v_mul_u32_u24 v{v}, 3072, v5")
        c(f"v_lshl_add_u32 v{v}, v7, 10, v{v}")
        c(f"v_lshl_add_u32 v{v}, v8, 5, v{v}")
        c(f"v_lshl_add_u32 v{v}, v6, 4, v{v}")
    c("s_lshl_b32 s20, s25, 7")
    c("s_mul_i32 s21, s23, 8*3072")
    c("s_add_u32 s20, s20, s21")
    c("s_mul_i32 s22, s23, 3072")
    c(f"s_add_u32 s22, s22, {B_BASE}")
    c("s_mov_b32 s24, s22")
    def stage():
        for b in range(4):
            for ii in range(3):
                c(f"s_add_u32 m0, s24, {b*6144 + ii*1024}")
                if ii == 0: c(f"s_add_u32 s21, s20, {b*16*3072}")
                else: c("s_nop 0")
                c(f"buffer_load_dwordx4 v{10+ii}, {sr(S_WQKV)}, s21 offen lds")
        c(f"s_add_u32 s20, s20, {64*3072}")
        c(f"s_add_u32 s24, s24, {B_SLOT}")
    c("s_mov_b32 s27, 4")
    if ONE:
        for q in range(3): c(f"v_mov_b32 v{24+q}, v{10+q}")
        c("s_cmp_ge_u32 s2, 64")
        c("s_cbranch_scc1 P2_NOMOD")
        c(f"s_cmp_eq_u32 s{S_WAVE}, 8")
        c("s_cbranch_scc0 P2_NOMOD")
        c("s_and_b32 s16, s2, 7")
        c("s_lshl_b32 s16, s16, 3")
        c("s_lshr_b32 s17, s2, 3")
        c("s_add_u32 s16, s16, s17")
        c("s_lshl_b32 s17, s16, 5")
        c.vm = []
        silu_frags(c, SCR + 16384)
        colsum_addr(c, 6144, SCR)
        colsum_dma(c, S_WM, 17, 6144, SCR, 0, 16)
        c("s_barrier")
        c("s_barrier")
        c("v_mov_b32 v22, 0")
        c(f"v_lshlrev_b32 v23, {2+FSH}, v1")
        c(f"s_lshl_b32 s18, s16, {7+FSH}")
        c(f"s_add_u32 s18, s18, {WS_FLG}")
        c("s_mov_b64 exec, 0xffffffff")
        c(f"buffer_store_dword v22, v23, {sr(S_WS)}, s18 offen sc1", "z")
        c("s_mov_b64 exec, -1")
        silu_frags2(c, SCR + 16384)
        c.wait_vm("cw")
        stamp_mid(c, 11)
        colsum_mma(c, 0, 0)
        colsum_mma(c, 8, 8)
        mod_store(c, 16)
        srd(c, 4, S_KA, 256)
        c("s_waitcnt vmcnt(0)")
        c("v_mov_b32 v22, 1")
        c("v_mov_b32 v23, 0")
        stamp_mid(c, 10)
        c("s_mov_b64 exec, 1")
        if os.environ.get("F1MODE", "last") == "last":
            c("v_mov_b32 v21, 1")
            c("buffer_atomic_add v21, v23, s[4:7], 0 offen sc0 sc1")
            c("s_waitcnt vmcnt(0)")
            c("v_readfirstlane_b32 s18, v21")
            c("s_cmp_eq_u32 s18, 63")
            c("s_cbranch_scc0 P2_NOTLAST")
            c("buffer_store_dword v22, v23, s[4:7], 0 offen offset:128 sc1")
            c.label("P2_NOTLAST")
        else:
            c("s_lshl_b32 s18, s16, 2")
            c("buffer_store_dword v22, v23, s[4:7], s18 offen sc1")
        c("s_mov_b64 exec, -1")
        for q in range(3): c(f"v_mov_b32 v{10+q}, v{24+q}")
        c("s_waitcnt vmcnt(0)")
        c(f"v_mov_b32 v23, {SCR + 20484}")
        c("ds_write_b32 v23, v22")
        c("s_branch P2_LPRE")
        c.label("P2_NOMOD")
        c("s_barrier")
    c("s_barrier")
    if ONE:
        c("s_cmp_ge_u32 s2, 64")
        c("s_cbranch_scc1 P2_LPRE")
        c(f"v_mov_b32 v23, {SCR + 20484}")
        c("s_mov_b32 s95, 0x400000")
        c.label("P2_W9")
        c("ds_read_b32 v22, v23")
        c("s_waitcnt lgkmcnt(0)")
        c("v_cmp_eq_u32 vcc, 1, v22")
        c("s_sub_u32 s95, s95, 1")
        c("s_cmp_eq_u32 s95, 0")
        c("s_cbranch_scc1 P2_LPRE")
        c("s_cbranch_vccnz P2_LPRE")
        c("s_sleep 2")
        c("s_branch P2_W9")
    c.label("P2_LPRE")
    stage()
    c("s_sub_u32 s27, s27, 1")
    if ONE:
        c("s_cmp_eq_u32 s27, 1")
        c("s_cbranch_scc0 P2_LPRE2")
        c(f"s_cmp_eq_u32 s{S_WAVE}, 9")
        c("s_cbranch_scc0 P2_NOT2")
        c("s_cmp_lt_u32 s2, 64")
        c("s_cbranch_scc1 P2_NOT2")
        c("s_lshr_b32 s12, s2, 3")
        c("s_sub_u32 s12, s12, 8")
        c("s_mul_i32 s13, s12, 160")
        c("s_and_b32 s14, s2, 1")
        c("s_lshl_b32 s14, s14, 9")
        c(f"s_add_u32 s14, s14, {192*3072}")
        for i in range(3):
            c(f"v_min_u32 v4, {159 - 64*i}, v1")
            c(f"v_add_u32 v4, {64*i}, v4")
            c("v_add_u32 v4, s13, v4")
            c("v_mul_u32_u24 v5, 5462, v4")
            c("v_lshrrev_b32 v5, 16, v5")
            c("v_mul_u32_u24 v6, 12, v5")
            c("v_sub_u32 v6, v4, v6")
            c("v_mul_u32_u24 v5, 3072, v5")
            c("v_lshrrev_b32 v7, 2, v6")
            c("v_lshl_add_u32 v5, v7, 10, v5")
            c("v_and_b32 v7, 3, v6")
            c("v_lshl_add_u32 v5, v7, 7, v5")
            c(f"buffer_load_dword v{31+i}, v5, {sr(S_WQKV)}, s14 offen")
        c("s_cmp_ge_u32 s12, 8")
        c("s_cbranch_scc1 P2_NOCODE")
        c("s_getpc_b64 s[4:5]")
        c.label("P2_PC")
        c(f"s_sub_u32 s4, s4, P2_PC-{NAME}_kernel")
        c("s_subb_u32 s5, s5, 0")
        c("v_lshlrev_b32 v4, 7, v1")
        c("s_lshl_b32 s13, s12, 13")
        c("v_add_u32 v4, s13, v4")
        c(f"v_min_u32 v4, CODE_END-{NAME}_kernel-4, v4")
        c("global_load_dword v34, v4, s[4:5]")
        c.label("P2_NOCODE")
        c("s_cmp_eq_u32 s12, 9")
        c("s_cbranch_scc0 P2_NOT2")
        c("v_lshlrev_b32 v4, 19, v1")
        c(f"buffer_load_dword v35, v4, {sr(S_WS)}, 0 offen")
        for S in (S_WO, S_WG, S_WU, S_WD, S_OUT):
            c(f"buffer_load_dword v35, v4, {sr(S)}, 0 offen")
        c.label("P2_NOT2")
        c("s_waitcnt vmcnt(0)")
        c("s_barrier")
        c.label("P2_LPRE2")
    c("s_cmp_lg_u32 s27, 0")
    c("s_cbranch_scc1 P2_LPRE")
    if not ONE:
        c("s_waitcnt vmcnt(36)")
        c("s_barrier")
    c("s_mov_b32 s24, s22")
    c("s_mov_b32 s27, 4")
    c.label("P2_LMAIN")
    c("s_waitcnt vmcnt(24)")
    c("s_barrier")
    stage()
    c("s_sub_u32 s27, s27, 1")
    c("s_cmp_lg_u32 s27, 0")
    c("s_cbranch_scc1 P2_LMAIN")
    for k in range(3):
        c(f"s_waitcnt vmcnt({24 - 12*k})")
        c("s_barrier")
    if FUSED:
        c("s_barrier")
        c(f"s_cmp_eq_u32 s{S_WAVE}, 8")
        c(f"s_cbranch_scc0 {END}")
        c("s_lshl_b32 s20, s25, 7")
        c("s_lshl_b32 s21, s26, 2")
        c("s_add_u32 s20, s20, s21")
        c(f"s_add_u32 s20, s20, {F2B}")
        signal(c, 20, 4, 0)
    else:
        c("s_endpgm")
    c.label(END)

QA, QB, NA, NB, SA, SB, PA, PB, OA, OB = 8, 12, 16, 32, 48, 64, 80, 88, 96, 112
KF = [128, 132]; VF = [136, 144]
LV = 65536; CMB = 131072; HLP = CMB + 4 * 18 * 256
NA_T = 6; NP_A = 4

def unit(a, S, P, mf, loads=None):
    a(mf[0])
    for p in range(8):
        a(f"v_exp_f32 v{S+2*p}, v{S+2*p}")
        a(f"v_exp_f32 v{S+2*p+1}, v{S+2*p+1}")
        if p == 2: a(mf[1])
        if p == 5: a(mf[2])
        if p >= 1:
            j = p - 1
            a(f"v_cvt_pk_bf16_f32 v{P+j}, v{S+2*j}, v{S+2*j+1}")
    a(f"v_cvt_pk_bf16_f32 v{P+7}, v{S+14}, v{S+15}")
    if loads:
        for l in loads: a(l)
def kv_loads(kb, vb, koff, voff, filler):
    return [f"ds_read_b128 {r4(KF[kb])}, v6 offset:{koff}", "s_mov_b64 exec, s[4:5]", filler,
            f"ds_read_b128 {r4(VF[vb])}, v7 offset:{voff}", f"ds_read_b128 {r4(VF[vb]+4)}, v7 offset:{voff+512}", "s_mov_b64 exec, -1"]
def smfma(S, kf, q, C):
    c = r16(C) if C is not None else "0"
    return f"v_mfma_f32_32x32x16_bf16 {r16(S)}, {r4(kf)}, {r4(q)}, {c}"
def pv(O, vf, p):
    return f"v_mfma_f32_32x32x16_bf16 {r16(O)}, {r4(vf)}, {r4(p)}, {r16(O)}"
def rowmax(a, S, dst):
    a(f"v_max3_f32 v{dst}, v{S}, v{S+1}, v{S+2}")
    for i in range(3, 15, 2): a(f"v_max3_f32 v{dst}, v{dst}, v{S+i}, v{S+i+1}")
    a(f"v_max_f32 v{dst}, v{dst}, v{S+15}")
def negfill(a):
    for N in (NA, NB):
        a(f"v_mov_b32 v{N+1}, v{N}")
    for N in (NA, NB):
        a(f"v_permlane32_swap_b32 v{N}, v{N+1}")
    for N in (NA, NB):
        a(f"v_max_f32 v{N}, v{N}, v{N+1}")
    for N in (NA, NB):
        a(f"v_xor_b32 v{N}, 0x80000000, v{N}")
    for i in range(1, 16):
        a(f"v_mov_b32 v{NA+i}, v{NA}")
        a(f"v_mov_b32 v{NB+i}, v{NB}")

def p3(a):
    END = "P3_END"
    a("s_and_b32 s25, s2, 7")
    a("s_lshl_b32 s25, s25, 2")
    a("s_bfe_u32 s26, s2, 0x20003")
    a("s_add_u32 s25, s25, s26")
    a("s_lshr_b32 s26, s2, 5")
    a("s_lshl_b32 s27, s25, 16")
    a("v_lshlrev_b32 v4, 4, v1")
    a(f"s_cmp_ge_u32 s{S_WAVE}, 8")
    a("s_cbranch_scc1 P3_LOADER")
    a("v_lshrrev_b32 v3, 5, v1")
    a("v_and_b32 v5, 15, v1")
    a("v_lshlrev_b32 v5, 4, v5")
    a("v_lshl_add_u32 v5, v3, 8, v5")
    a("s_mov_b32 s4, 0x0000ffff")
    a("s_mov_b32 s5, 0x0000ffff")
    a(f"s_and_b32 s8, s{S_WAVE}, 3")
    a(f"s_lshr_b32 s9, s{S_WAVE}, 2")
    a("s_lshl_b32 s10, s26, 18")
    a("s_lshl_b32 s11, s8, 16")
    a("s_add_u32 s10, s10, s11")
    a("s_lshl_b32 s11, s25, 10")
    a("s_add_u32 s10, s10, s11")
    a(f"s_add_u32 s10, s10, {WS_O}")
    a("s_add_u32 s11, s10, 32768")
    a("s_lshl_b32 s12, s9, 15")
    a("v_add_u32 v6, s12, v4")
    a("v_add_u32 v7, s12, v5")
    a(f"v_add_u32 v7, {LV}, v7")
    a("s_lshl_b32 s12, s8, 11")
    a(f"s_add_u32 s12, s12, {CMB}")
    a("v_add_u32 v2, s12, v4")
    a(f"s_mov_b32 s6, {NP_A // 2}")
    a("s_mov_b32 s7, 0")
    a("v_and_b32 v3, 27, v1")
    a("v_cmp_eq_u32 vcc, 16, v3")
    a("v_mov_b32 v3, 0x3f803f80")
    a(f"v_cndmask_b32 v{VF[0]}, 0, v3, vcc")
    for r in range(VF[0] + 1, VF[0] + 16): a(f"v_mov_b32 v{r}, v{VF[0]}")
    for r in range(OA, OA + 32): a(f"v_mov_b32 v{r}, 0")
    for r in range(PB, PB + 8): a(f"v_mov_b32 v{r}, 0")
    a("s_barrier")
    a(f"ds_read_b128 {r4(QA)}, v2")
    a(f"ds_read_b128 {r4(QB)}, v2 offset:1024")
    a(f"ds_read_b128 {r4(PA)}, v4")
    a.label("P3_RESTART")
    a(f"ds_read_b128 {r4(KF[0])}, v6")
    a(f"ds_read_b128 {r4(KF[1])}, v6 offset:1024")
    a("s_mov_b64 exec, s[4:5]")
    a(f"ds_read_b128 {r4(VF[0])}, v7")
    a(f"ds_read_b128 {r4(VF[0]+4)}, v7 offset:512")
    a("s_mov_b64 exec, -1")
    a("s_waitcnt lgkmcnt(0)")
    a("s_cmp_eq_u32 s7, 0")
    a("s_cbranch_scc0 P3_HAVEM")
    a(smfma(SA, PA, QA, None))
    a(smfma(SB, PA, QB, None))
    rowmax(a, SA, NA)
    rowmax(a, SB, NB)
    negfill(a)
    a.label("P3_HAVEM")
    stamp_mid(a, 0 if not FUSED else 2)
    a("s_nop 1")
    a(smfma(SA, KF[0], QA, NA))
    a("s_nop 7")
    a("s_nop 3")
    b = Asm()
    b.lines.append(".p2align 6")
    b.label("P3_LOOP")
    for par in range(2):
        kc, kn = KF[par], KF[1 - par]
        vc, vp = VF[par], VF[1 - par]
        unit(b, SA, PA, [smfma(SB, kc, QB, NB), pv(OB, vp, PB), pv(OB, vp + 4, PB + 4)],
             kv_loads(par, 1 - par, (par + 2) * 1024, (par + 1) * 1024, ["s_sub_u32 s6, s6, 1", "s_nop 0"][par]))
        b("s_waitcnt lgkmcnt(3)")
        unit(b, SB, PB, [smfma(SA, kn, QA, NA), pv(OA, vc, PA), pv(OA, vc + 4, PA + 4)])
    b("v_add_u32 v6, 0x800, v6")
    b("v_add_u32 v7, 0x800, v7")
    b("s_cmp_lg_u32 s6, 0")
    b("s_cbranch_scc1 P3_LOOP")
    loop = b.loop(b.lines)
    assert len(loop) == len(b.lines)
    a.lines += loop
    c = a
    c("s_cmp_eq_u32 s7, 0")
    c("s_cbranch_scc0 P3_DONE")
    c("s_barrier")
    c("s_mov_b32 s7, 1")
    c(f"s_mov_b32 s6, {(32 - NP_A) // 2}")
    c("s_branch P3_LOOP")
    c.label("P3_DONE")
    c("s_nop 1")
    c(pv(OB, VF[1], PB))
    c(pv(OB, VF[1] + 4, PB + 4))
    c("s_waitcnt lgkmcnt(0)")
    stamp_mid(c, 1 if not FUSED else 3)
    c("s_cmp_eq_u32 s7, 1")
    c("s_cbranch_scc0 P3_FINAL")
    c("v_lshlrev_b32 v2, 2, v1")
    c("s_mul_i32 s12, s8, 4608")
    c(f"s_add_u32 s12, s12, {CMB}")
    c("v_add_u32 v2, s12, v2")
    c("s_cmp_eq_u32 s9, 0")
    c("s_cbranch_scc1 P3_WAITP")
    c("s_nop 7")
    c("s_nop 3")
    for i in range(9):
        c(f"ds_write_b32 v2, v{OA+i} offset:{i*256}")
        c(f"ds_write_b32 v2, v{OB+i} offset:{(9+i)*256}")
    c("s_waitcnt lgkmcnt(0)")
    c("s_barrier")
    if FUSED: c("s_barrier")
    finish(c, 2, END, 48)
    c.label("P3_WAITP")
    c("s_barrier")
    for i in range(9): c(f"ds_read_b32 v{SA+i}, v2 offset:{i*256}")
    for i in range(9): c(f"ds_read_b32 v{SB+i}, v2 offset:{(9+i)*256}")
    c("s_waitcnt lgkmcnt(9)")
    for i in range(9): c(f"v_add_f32 v{OA+i}, v{OA+i}, v{SA+i}")
    c("s_waitcnt lgkmcnt(0)")
    for i in range(9): c(f"v_add_f32 v{OB+i}, v{OB+i}, v{SB+i}")
    c(f"v_mov_b32 v{SA}, 0")
    for O in (OA, OB):
        for i in range(0, 8, 2): c(f"v_max3_f32 v{SA}, v{SA}, abs(v{O+i}), abs(v{O+i+1})")
    c(f"v_add_f32 v{SA+1}, v{OA}, v{OA+1}")
    c(f"v_add_f32 v{SA+2}, v{OB}, v{OB+1}")
    for i in range(2, 8):
        c(f"v_add_f32 v{SA+1}, v{SA+1}, v{OA+i}")
        c(f"v_add_f32 v{SA+2}, v{SA+2}, v{OB+i}")
    c("s_mov_b32 s12, 0x71800000")
    c("s_mov_b32 s13, 0x21800000")
    c(f"v_cmp_gt_f32 vcc, s12, v{OA+8}")
    c(f"v_cmp_gt_f32 s[14:15], s12, v{OB+8}")
    c(f"v_cmp_lt_f32 s[16:17], s13, v{OA+8}")
    c(f"v_cmp_lt_f32 s[18:19], s13, v{OB+8}")
    c("s_mov_b32 s13, 0x7f000000")
    c(f"v_cmp_gt_f32 s[20:21], s13, v{SA}")
    c(f"v_cmp_o_f32 s[22:23], v{SA+1}, v{SA+2}")
    c("s_and_b64 vcc, vcc, s[14:15]")
    c("s_and_b64 s[16:17], s[16:17], s[18:19]")
    c("s_and_b64 s[20:21], s[20:21], s[22:23]")
    c("s_and_b64 vcc, vcc, s[16:17]")
    c("s_and_b64 vcc, vcc, s[20:21]")
    c("s_cmp_eq_u64 vcc, -1")
    c("s_cbranch_scc0 P3_FALLBACK")
    c.label("P3_FINAL")
    c("s_nop 7")
    c("s_nop 3")
    for (O, P, so) in ((OA, PA, 10), (OB, PB, 11)):
        c(f"v_rcp_f32 v{O+8}, v{O+8}")
        for i in range(8): c(f"v_mul_f32 v{O+i}, v{O+i}, v{O+8}")
        for j in range(4): c(f"v_cvt_pk_bf16_f32 v{P+j}, v{O+2*j}, v{O+2*j+1}")
        c(f"buffer_store_dwordx4 {r4(P)}, v4, {sr(S_WS)}, s{so} offen {SC}")
    if FUSED:
        c("s_waitcnt vmcnt(0)")
        c("s_barrier")
    finish(c, 2, END, 48)
    c.label("P3_FALLBACK")
    c("s_mov_b32 s7, 2")
    c("s_mov_b32 s6, 64")
    c("v_mov_b32 v6, v4")
    c(f"v_mov_b32 v{NA}, 0xff800000")
    c(f"v_mov_b32 v{NB}, 0xff800000")
    c.label("P3_FBLOOP")
    c(f"ds_read_b128 {r4(KF[0])}, v6")
    c("s_waitcnt lgkmcnt(0)")
    c(smfma(SA, KF[0], QA, None))
    c(smfma(SB, KF[0], QB, None))
    for (S, N) in ((SA, NA), (SB, NB)):
        for i in range(0, 16, 2): c(f"v_max3_f32 v{N}, v{N}, v{S+i}, v{S+i+1}")
    c("v_add_u32 v6, 0x400, v6")
    c("s_sub_u32 s6, s6, 1")
    c("s_cmp_lg_u32 s6, 0")
    c("s_cbranch_scc1 P3_FBLOOP")
    negfill(c)
    for r in range(OA, OA + 32): c(f"v_mov_b32 v{r}, 0")
    for r in range(PB, PB + 8): c(f"v_mov_b32 v{r}, 0")
    c("v_mov_b32 v6, v4")
    c(f"v_add_u32 v7, {LV}, v5")
    c("s_mov_b32 s6, 32")
    c("s_branch P3_RESTART")
    c.label("P3_LOADER")
    c("s_setprio 3")
    c(f"s_sub_u32 s23, s{S_WAVE}, 8")
    c("s_lshr_b32 s20, s25, 2")
    c("s_lshl_b32 s20, s20, 7")
    c(f"s_add_u32 s20, s20, {F2B}")
    poll(c, 20, 32, 8, 1)
    c(f"s_mul_i32 s20, s23, {WS_V - WS_K}")
    c("s_add_u32 s20, s20, s27")
    c(f"s_add_u32 s20, s20, {WS_K}")
    c("s_lshl_b32 s21, s23, 16")
    c("s_lshl_b32 s22, s26, 13")
    c("s_add_u32 s22, s22, s27")
    c("s_lshl_b32 s24, s23, 12")
    c("s_add_u32 s22, s22, s24")
    c(f"s_add_u32 s22, s22, {WS_Q}")
    c(f"s_add_u32 s24, s24, {CMB}")
    c(f"s_mov_b32 s6, {NA_T}")
    c("s_mov_b32 s7, 0")
    c.label("P3_LKV")
    for hf in range(2):
        c(f"s_add_u32 m0, s21, {hf*32768}")
        c(f"s_add_u32 s8, s20, {hf*32768}")
        c(f"buffer_load_dwordx4 v4, {sr(S_WS)}, s8 offen {SC} lds")
    c("s_add_u32 s20, s20, 1024")
    c("s_add_u32 s21, s21, 1024")
    c("s_sub_u32 s6, s6, 1")
    c("s_cmp_lg_u32 s6, 0")
    c("s_cbranch_scc1 P3_LKV")
    c("s_cmp_eq_u32 s7, 0")
    c("s_cbranch_scc0 P3_LKV2")
    for i in range(4):
        c(f"s_add_u32 m0, s24, {i*1024}")
        c(f"s_add_u32 s8, s22, {i*1024}")
        c(f"buffer_load_dwordx4 v4, {sr(S_WS)}, s8 offen {SC} lds")
    c("s_waitcnt vmcnt(0)")
    if FUSED: stamp_mid(c, 2)
    c("s_barrier")
    c("s_mov_b32 s7, 1")
    c(f"s_mov_b32 s6, {32 - NA_T}")
    c("s_branch P3_LKV")
    c.label("P3_LKV2")
    c("s_waitcnt vmcnt(0)")
    c("s_barrier")
    c(f"s_cmp_eq_u32 s{S_WAVE}, 8")
    c("s_cbranch_scc0 P3_HPREF")
    if ONE:
        c("s_cmp_ge_u32 s2, 128")
        c("s_cbranch_scc1 P3_NOMOD")
        c("s_and_b32 s16, s2, 7")
        c("s_lshl_b32 s16, s16, 4")
        c("s_lshr_b32 s17, s2, 3")
        c("s_add_u32 s16, s16, s17")
        c("s_add_u32 s16, s16, 64")
        c("s_lshl_b32 s17, s16, 5")
        c.vm = []
        silu_frags(c, HLP)
        silu_frags2(c, HLP)
        c("s_waitcnt lgkmcnt(0)")
        colsum_addr(c, 6144, HLP)
        for half in range(2):
            colsum_dma(c, S_WM, 17, 6144, HLP, half * 8, 8)
            c("s_waitcnt vmcnt(0)")
            colsum_mma(c, half * 8, 0)
        mod_store(c, 16)
        c("s_waitcnt vmcnt(0)")
        c("s_lshl_b32 s10, s16, 2")
        c(f"s_add_u32 s10, s10, {F1B - 256}")
        signal(c, 10, 4)
        c.label("P3_NOMOD")
    c("s_cmp_ge_u32 s2, 224")
    c("s_cbranch_scc1 P3_LEND")
    if ONE:
        c(f"s_mov_b32 s10, {F1B + 128}")
        poll(c, 10, 64, 8)
    c("s_bfe_u32 s8, s2, 0x20001")
    c("s_mul_i32 s8, s8, 28")
    c("s_lshr_b32 s9, s2, 3")
    c("s_add_u32 s8, s8, s9")
    c("s_and_b32 s12, s2, 1")
    c("s_mul_i32 s12, s12, 56")
    c("s_cmp_ge_u32 s8, 56")
    for q in range(4): c(f"s_cselect_b32 s{4+q}, s{S_WU+q}, s{S_WG+q}")
    c("s_cselect_b32 s13, 56, 0")
    c("s_cselect_b32 s9, 14336, 0")
    c("s_cselect_b32 s14, 112, 0")
    c("s_mov_b32 s7, 0x00020000")
    c("s_sub_u32 s8, s8, s13")
    c("s_add_u32 s8, s8, s12")
    c("s_add_u32 s14, s14, s8")
    c("s_lshl_b32 s10, s8, 5")
    c("v_and_b32 v10, 15, v1")
    c("v_lshrrev_b32 v11, 4, v1")
    c("v_lshlrev_b32 v12, 10, v10")
    c("v_lshl_add_u32 v12, v11, 4, v12")
    c(f"v_add_u32 v12, {WS_AB}, v12")
    c("v_cmp_gt_u32 vcc, 2, v10")
    c("v_mov_b32 v13, 0x7ff00000")
    c("v_cndmask_b32 v12, v13, v12, vcc")
    for i in range(16):
        c(f"buffer_load_dwordx4 {r4(32+4*i)}, v12, {sr(S_WS)}, 0 offen offset:{64*i} {SC}")
    colsum_addr(c, 3584, HLP)
    for half in range(2):
        colsum_dma(c, 4, 10, 3584, HLP, half * 8, 8)
        c("s_waitcnt vmcnt(0)")
        colsum_mma(c, half * 8, 0)
    c("v_cvt_pk_bf16_f32 v6, v16, v17")
    c("v_lshlrev_b32 v10, 16, v6")
    c("v_and_b32 v11, 0xffff0000, v6")
    c("v_sub_f32 v12, v16, v10")
    c("v_sub_f32 v13, v17, v11")
    c("v_cvt_pk_bf16_f32 v14, v10, v12")
    c("v_cvt_pk_bf16_f32 v15, v11, v13")
    c("v_lshlrev_b32 v10, 3, v1")
    c("s_lshl_b32 s10, s8, 7")
    c("s_add_u32 s10, s10, s9")
    c(f"s_add_u32 s10, s10, {WS_EXT}")
    c("s_mov_b64 exec, 0xffff")
    c(f"buffer_store_dwordx2 v[14:15], v10, {sr(S_WS)}, s10 offen {SC}")
    c("s_mov_b64 exec, -1")
    if FUSED:
        c("s_waitcnt vmcnt(0)")
        c("s_lshl_b32 s10, s14, 2")
        c(f"s_add_u32 s10, s10, {FEB}")
        signal(c, 10, 4)
    c("s_branch P3_LEND")
    c.label("P3_HPREF")
    c("v_lshlrev_b32 v8, 7, v1")
    c("s_lshr_b32 s4, s2, 3")
    if ONE:
        c("v_lshrrev_b32 v9, 2, v1")
        c("v_mul_u32_u24 v9, 6144, v9")
        c("v_and_b32 v10, 3, v1")
        c("v_lshl_add_u32 v9, v10, 7, v9")
        c("s_mul_i32 s5, s4, 16*6144")
        c("s_and_b32 s6, s2, 7")
        c("s_lshl_b32 s6, s6, 9")
        c("s_add_u32 s5, s5, s6")
        c("s_add_u32 s5, s5, 2048")
        c(f"buffer_load_dword v30, v9, {sr(S_WM)}, s5 offen")
    c("s_lshl_b32 s5, s4, 14")
    c(f"buffer_load_dword v16, v8, {sr(S_WO)}, s5 offen")
    c("s_add_u32 s5, s5, 8192")
    c(f"buffer_load_dword v17, v8, {sr(S_WO)}, s5 offen")
    c("s_and_b32 s6, s2, 1")
    c("s_mul_i32 s6, s6, 1792")
    c("s_mul_i32 s7, s4, 16*3584")
    c("s_add_u32 s6, s6, s7")
    for i in range(4):
        c(f"v_add_u32 v9, {64*i}, v1")
        c("v_mul_u32_u24 v10, 4682, v9")
        c("v_lshrrev_b32 v10, 16, v10")
        c("v_mul_u32_u24 v11, 14, v10")
        c("v_sub_u32 v11, v9, v11")
        c("v_mul_u32_u24 v10, 3584, v10")
        c("v_lshl_add_u32 v10, v11, 7, v10")
        if i == 3:
            c("v_cmp_gt_u32 vcc, 224, v9")
            c("v_mov_b32 v13, 0x7ff00000")
            c("v_cndmask_b32 v10, v13, v10, vcc")
        c(f"buffer_load_dword v{18+2*i}, v10, {sr(S_WG)}, s6 offen")
        c(f"buffer_load_dword v{19+2*i}, v10, {sr(S_WU)}, s6 offen")
    c("s_mul_i32 s5, s2, 7168")
    c("s_mov_b32 s6, 0xffffffff")
    c("s_mov_b32 s7, 0x00ffffff")
    c("s_mov_b64 exec, s[6:7]")
    c(f"buffer_load_dword v26, v8, {sr(S_WD)}, s5 offen")
    c("s_mov_b64 exec, -1")
    c.label("P3_LEND")
    if FUSED:
        c("s_waitcnt vmcnt(0)")
        c("s_barrier")
        stamp_mid(c, 3)
        c("s_barrier")
        c(f"s_cmp_eq_u32 s{S_WAVE}, 8")
        c(f"s_cbranch_scc0 {END}")
        c("s_lshl_b32 s20, s26, 7")
        c("s_lshl_b32 s21, s25, 2")
        c("s_add_u32 s20, s20, s21")
        c(f"s_add_u32 s20, s20, {F3B}")
        signal(c, 20, 4, 4)
    else:
        c("s_endpgm")
    c.label(END)

def tile64_ids(a):
    a("s_bfe_u32 s25, s2, 0x30003")
    a("s_and_b32 s26, s2, 7")
    a("s_lshl_b32 s26, s26, 2")
    a("s_lshr_b32 s27, s2, 6")
    a("s_add_u32 s26, s26, s27")

def tile64_addrs(a, vA, vB, t0):
    a(f"v_lshlrev_b32 v{vA}, 4, v1")
    a("s_lshl_b32 s20, s23, 12")
    a(f"v_add_u32 v{vA}, s20, v{vA}")
    a(f"v_lshrrev_b32 v{t0+1}, 5, v1")
    a(f"v_bfe_u32 v{t0}, v1, 2, 2")
    a(f"v_lshl_add_u32 v{t0+2}, v{t0+1}, 2, v{t0}")
    a(f"v_lshlrev_b32 v{vB}, 7, v{t0+2}")
    a(f"v_lshrrev_b32 v{t0}, 1, v{t0}")
    a(f"v_xor_b32 v{t0}, s24, v{t0}")
    a(f"v_lshl_add_u32 v{vB}, v{t0}, 6, v{vB}")
    a(f"v_bfe_u32 v{t0}, v1, 4, 1")
    a(f"v_lshl_add_u32 v{vB}, v{t0}, 5, v{vB}")
    a(f"v_and_b32 v{t0}, 3, v1")
    a(f"v_lshl_add_u32 v{vB}, v{t0}, 3, v{vB}")
    a(f"v_add_u32 v{vB}, 8192, v{vB}")
    a(f"v_add_u32 v{vA+1}, 65536, v{vA}")
    a(f"v_add_u32 v{vB+1}, 65536, v{vB}")

def bload64_addr(c, v):
    c("v_lshrrev_b32 v3, 3, v1")
    c("v_bfe_u32 v8, v1, 2, 1")
    c("v_bfe_u32 v9, v1, 4, 1")
    c("v_xor_b32 v8, v8, v9")
    c(f"v_lshlrev_b32 v{v}, 10, v3")
    c(f"v_lshl_add_u32 v{v}, v8, 6, v{v}")
    c("v_and_b32 v8, 3, v1")
    c(f"v_lshl_add_u32 v{v}, v8, 4, v{v}")

def p4(a):
    STG = 16384; XT = 8 * STG; TB = XT + 8192
    END = "P4_END"
    tile64_ids(a)
    a(f"s_cmp_ge_u32 s{S_WAVE}, 8")
    a("s_cbranch_scc1 P4_LOADER")
    a(f"s_cmp_ge_u32 s{S_WAVE}, 4")
    a("s_cbranch_scc1 P4_IDLE")
    a(f"s_and_b32 s23, s{S_WAVE}, 1")
    a(f"s_lshr_b32 s24, s{S_WAVE}, 1")
    a("v_and_b32 v3, 31, v1")
    a("v_lshrrev_b32 v4, 5, v1")
    a("s_lshl_b32 s4, s26, 16")
    a("s_lshl_b32 s5, s23, 15")
    a("s_add_u32 s4, s4, s5")
    a("s_lshl_b32 s5, s25, 12")
    a("s_add_u32 s4, s4, s5")
    a("s_lshl_b32 s5, s24, 11")
    a("s_add_u32 s4, s4, s5")
    a(f"s_add_u32 s5, s4, {WS_X1S}")
    a(f"s_add_u32 s4, s4, {WS_X1}")
    a("s_lshl_b32 s6, s26, 10")
    a("s_lshl_b32 s7, s23, 9")
    a("s_add_u32 s6, s6, s7")
    a("s_lshl_b32 s7, s25, 15")
    a("s_add_u32 s6, s6, s7")
    a("s_lshl_b32 s7, s24, 3")
    a("s_add_u32 s6, s6, s7")
    a(f"s_add_u32 s6, s6, {WS_ST2}")
    tile64_addrs(a, 16, 20, 24)
    a("v_bfe_u32 v5, v1, 1, 3")
    a("s_lshl_b32 s7, s24, 2")
    a("v_xor_b32 v5, s7, v5")
    a("v_lshlrev_b32 v8, 7, v3")
    a("v_lshl_add_u32 v8, v5, 4, v8")
    a("v_lshl_add_u32 v8, v4, 3, v8")
    a("s_lshl_b32 s7, s23, 12")
    a(f"s_add_u32 s7, s7, {XT}")
    a("v_add_u32 v8, s7, v8")
    for g in range(1, 4): a(f"v_xor_b32 v{8+g}, {16*g}, v8")
    a("v_lshlrev_b32 v12, 4, v4")
    a("s_lshl_b32 s7, s24, 7")
    a(f"s_add_u32 s7, s7, {TB}")
    a("v_add_u32 v12, s7, v12")
    a("v_lshlrev_b32 v5, 4, v1")
    a("v_lshlrev_b32 v6, 4, v3")
    a("v_lshl_add_u32 v6, v4, 2, v6")
    ACC = 32
    for r in range(ACC, ACC + 16): a(f"v_mov_b32 v{r}, 0")
    FR = [48, 56]
    def reads(s):
        c, ks = divmod(s, 4)
        F = FR[s & 1]
        hi = int(c >= 4)
        off = (c % 4) * STG
        a(f"ds_read_b128 {r4(F)}, v{16+hi} offset:{off + ks*1024}")
        a(f"ds_read_b64_tr_b16 v[{F+4}:{F+5}], v{20+hi} offset:{off + ks*2048}")
        a(f"ds_read_b64_tr_b16 v[{F+6}:{F+7}], v{20+hi} offset:{off + ks*2048 + 1024}")
    a("s_barrier")
    stamp_mid(a, 0 if not FUSED else 4)
    reads(0)
    for s in range(32):
        if s + 1 < 32:
            if (s + 1) % 8 == 0: a("s_barrier")
            reads(s + 1)
            a("s_waitcnt lgkmcnt(3)")
        else:
            for g in range(4): a(f"ds_read_b64 v[{64+2*g}:{65+2*g}], v{8+g}")
            for g in range(4): a(f"ds_read_b128 {r4(72+4*g)}, v12 offset:{g*32}")
            for g in range(4): a(f"ds_read_b128 {r4(104+4*g)}, v12 offset:{256+g*32}")
            a("s_waitcnt lgkmcnt(12)")
        F = FR[s & 1]
        a(f"v_mfma_f32_32x32x16_bf16 {r16(ACC)}, {r4(F+4)}, {r4(F)}, {r16(ACC)}")
    stamp_mid(a, 1 if not FUSED else 5)
    a("s_waitcnt lgkmcnt(8)")
    for g in range(4):
        for d in range(2):
            a(f"v_lshlrev_b32 v{88+4*g+2*d}, 16, v{64+2*g+d}")
            a(f"v_and_b32 v{89+4*g+2*d}, 0xffff0000, v{64+2*g+d}")
    a("s_waitcnt lgkmcnt(0)")
    for r in range(16): a(f"v_fma_f32 v{88+r}, v{72+r}, v{ACC+r}, v{88+r}")
    for j in range(8): a(f"v_cvt_pk_bf16_f32 v{48+j}, v{88+2*j}, v{89+2*j}")
    for j in range(8):
        a(f"v_lshlrev_b32 v{88+2*j}, 16, v{48+j}")
        a(f"v_and_b32 v{89+2*j}, 0xffff0000, v{48+j}")
    for r in range(16): a(f"v_mul_f32 v{104+r}, v{104+r}, v{88+r}")
    for j in range(8): a(f"v_cvt_pk_bf16_f32 v{72+j}, v{104+2*j}, v{105+2*j}")
    a(f"buffer_store_dwordx4 v[72:75], v5, {sr(S_WS)}, s5 offen {SC}")
    a(f"buffer_store_dwordx4 v[76:79], v5, {sr(S_WS)}, s5 offen offset:1024 {SC}")
    a("v_add_f32 v56, v88, v89")
    a("v_mul_f32 v57, v88, v88")
    a("v_add_f32 v58, v90, v91")
    a("v_mul_f32 v59, v89, v89")
    a("v_fmac_f32 v57, v90, v90")
    a("v_fmac_f32 v59, v91, v91")
    for r in range(4, 16, 2):
        a(f"v_add_f32 v56, v56, v{88+r}")
        a(f"v_fmac_f32 v57, v{88+r}, v{88+r}")
        a(f"v_add_f32 v58, v58, v{89+r}")
        a(f"v_fmac_f32 v59, v{89+r}, v{89+r}")
    a("v_add_f32 v56, v56, v58")
    a("v_add_f32 v57, v57, v59")
    a("v_permlane32_swap_b32 v56, v57")
    a("v_add_f32 v56, v56, v57")
    a(f"buffer_store_dword v56, v6, {sr(S_WS)}, s6 offen {SC}")
    a(f"buffer_store_dwordx4 v[48:51], v5, {sr(S_WS)}, s4 offen {SC}")
    a(f"buffer_store_dwordx4 v[52:55], v5, {sr(S_WS)}, s4 offen offset:1024 {SC}")
    if FUSED:
        a("s_waitcnt vmcnt(0)")
        a("s_barrier")
    finish(a, 3, END, 88)
    c = a
    c.label("P4_IDLE")
    if FUSED:
        barriers(c, 5)
        c(f"s_branch {END}")
    else:
        c("s_endpgm")
    c.label("P4_LOADER")
    c("s_setprio 3")
    c(f"s_cmp_eq_u32 s{S_WAVE}, 8")
    c("s_cbranch_scc0 P4_LB")
    c("v_lshrrev_b32 v3, 3, v1")
    c("v_and_b32 v4, 7, v1")
    c("v_lshrrev_b32 v5, 4, v1")
    c("v_xor_b32 v6, v4, v5")
    c("v_lshlrev_b32 v10, 10, v3")
    c("v_lshl_add_u32 v10, v6, 4, v10")
    c("v_xor_b32 v11, 64, v10")
    c("v_lshlrev_b32 v12, 4, v1")
    c("s_lshl_b32 s4, s26, 16")
    c("s_lshl_b32 s5, s25, 7")
    c("s_add_u32 s5, s5, s4")
    def xtile():
        for i in range(8):
            c(f"s_mov_b32 m0, {XT + i*1024}")
            c(f"s_add_u32 s6, s5, {i*8192}")
            c(f"buffer_load_dwordx4 v{10 + (i & 1)}, {sr(S_X)}, s6 offen lds")
    if FUSED: xtile()
    c("s_lshr_b32 s6, s26, 2")
    c("s_lshl_b32 s6, s6, 7")
    c(f"s_add_u32 s6, s6, {F3B}")
    poll(c, 6, 32, 14, 5)
    c(f"s_add_u32 s4, s4, {WS_O}")
    c("s_mov_b32 s7, 0")
    c("s_mov_b32 s8, 8")
    c.label("P4_LA")
    for i in range(8):
        tt, k = i >> 2, i & 3
        c(f"s_add_u32 m0, s7, {i*1024}")
        c(f"s_add_u32 s6, s4, {tt*32768 + k*1024}")
        c(f"buffer_load_dwordx4 v12, {sr(S_WS)}, s6 offen {SC} lds")
    c("s_add_u32 s4, s4, 4096")
    c(f"s_add_u32 s7, s7, {STG}")
    c("s_sub_u32 s8, s8, 1")
    c("s_and_b32 s9, s8, 5")
    c("s_cmp_eq_u32 s9, 1")
    c("s_cbranch_scc0 P4_LANB")
    c("s_waitcnt vmcnt(24)")
    c("s_barrier")
    c.label("P4_LANB")
    c("s_cmp_lg_u32 s8, 0")
    c("s_cbranch_scc1 P4_LA")
    if not FUSED: xtile()
    c(f"s_waitcnt vmcnt({16 if FUSED else 24})")
    c("s_barrier")
    c("s_waitcnt vmcnt(0)")
    c("s_barrier")
    if FUSED:
        c("s_barrier")
        c("s_lshr_b32 s4, s26, 1")
        c("s_lshl_b32 s4, s4, 7")
        c("s_and_b32 s5, s26, 1")
        c("s_lshl_b32 s5, s5, 3")
        c("s_add_u32 s5, s5, s25")
        c("s_lshl_b32 s5, s5, 2")
        c("s_add_u32 s4, s4, s5")
        c(f"s_add_u32 s4, s4, {F4B}")
        signal(c, 4, 4, 6)
        c(f"s_branch {END}")
    else:
        c("s_endpgm")
    c.label("P4_LB")
    bload64_addr(c, 10)
    c("s_lshl_b32 s4, s25, 7")
    c("s_mov_b32 s7, 8192")
    c("s_mov_b32 s8, 8")
    c.label("P4_LBL")
    for i in range(8):
        c(f"s_add_u32 m0, s7, {i*1024}")
        c(f"s_add_u32 s6, s4, {i*8192}")
        c(f"buffer_load_dwordx4 v10, {sr(S_WO)}, s6 offen lds")
    c("s_add_u32 s4, s4, 65536")
    c(f"s_add_u32 s7, s7, {STG}")
    c("s_sub_u32 s8, s8, 1")
    if not FUSED:
        c("s_and_b32 s9, s8, 5")
        c("s_cmp_eq_u32 s9, 1")
        c("s_cbranch_scc0 P4_LBNB")
        c("s_waitcnt vmcnt(24)")
        c("s_barrier")
        c.label("P4_LBNB")
    else:
        c("s_waitcnt vmcnt(48)")
    c("s_cmp_lg_u32 s8, 0")
    c("s_cbranch_scc1 P4_LBL")
    if ONE:
        for q in range(2):
            c(f"s_mov_b32 s4, {F1B + 256*q}")
            poll(c, 4, 64, 14)
    c("v_lshlrev_b32 v10, 2, v1")
    c("s_lshl_b32 s4, s25, 8")
    c(f"s_add_u32 s4, s4, {WS_MOD + 4096}")
    c(f"s_mov_b32 m0, {TB}")
    c("s_add_u32 s5, s4, 4096")
    c(f"buffer_load_dword v10, {sr(S_WS)}, s4 offen {SC} lds")
    c(f"s_mov_b32 m0, {TB + 256}")
    c("s_nop 0")
    c(f"buffer_load_dword v10, {sr(S_WS)}, s5 offen {SC} lds")
    if FUSED:
        c("s_waitcnt vmcnt(0)")
        barriers(c, 5)
    else:
        c("s_waitcnt vmcnt(18)")
        c("s_barrier")
        c("s_waitcnt vmcnt(0)")
        c("s_barrier")
        c("s_endpgm")
    c.label(END)

def p5(a):
    A_SZ = 16384; STG = 49152; NS = 3
    TST = NS * STG
    TEX = TST + 2048
    ACC = 32; FR = [96, 128]
    END = "P5_END"
    a("s_cmp_ge_u32 s2, 224")
    a(f"s_cbranch_scc1 {END if FUSED else 'P5_EXIT'}")
    a("s_lshr_b32 s27, s2, 3")
    a("s_mul_i32 s20, s27, 37")
    a("s_lshr_b32 s20, s20, 8")
    a("s_mul_i32 s21, s20, 7")
    a("s_sub_u32 s25, s27, s21")
    a("s_and_b32 s21, s2, 1")
    a("s_mul_i32 s21, s21, 7")
    a("s_add_u32 s25, s25, s21")
    a("s_bfe_u32 s26, s2, 0x20001")
    a("s_lshl_b32 s26, s26, 2")
    a("s_add_u32 s26, s26, s20")
    a(f"s_cmp_ge_u32 s{S_WAVE}, 8")
    a("s_cbranch_scc1 P5_LOADER")
    a(f"s_and_b32 s23, s{S_WAVE}, 1")
    a(f"s_lshr_b32 s24, s{S_WAVE}, 1")
    a("v_and_b32 v26, 15, v1")
    a("v_lshrrev_b32 v27, 4, v1")
    a("v_lshlrev_b32 v16, 9, v27")
    a("v_lshl_add_u32 v16, v26, 4, v16")
    a("s_lshl_b32 s20, s23, 13")
    a("v_add_u32 v16, s20, v16")
    a(f"v_add_u32 v17, {2*STG}, v16")
    a("v_bfe_u32 v28, v1, 2, 3")
    a("v_lshrrev_b32 v29, 5, v1")
    a("v_lshl_add_u32 v29, v29, 4, v28")
    a("v_lshlrev_b32 v18, 8, v29")
    a("s_lshl_b32 s20, s24, 1")
    a("v_xor_b32 v28, s20, v28")
    a("v_lshl_add_u32 v18, v28, 5, v18")
    a("v_and_b32 v28, 3, v1")
    a("v_lshl_add_u32 v18, v28, 3, v18")
    a(f"v_add_u32 v18, {A_SZ}, v18")
    a(f"v_add_u32 v19, {STG}, v18")
    a(f"v_add_u32 v20, {2*STG}, v18")
    for i in range(3): a(f"v_xor_b32 v{21+i}, 32, v{18+i}")
    for r in range(ACC, ACC + 64): a(f"v_mov_b32 v{r}, 0")
    a("v_lshlrev_b32 v24, 4, v26")
    a("s_lshl_b32 s20, s23, 10")
    a(f"s_add_u32 s20, s20, {TST}")
    a("v_add_u32 v24, s20, v24")
    a("v_lshlrev_b32 v25, 3, v26")
    a("s_lshl_b32 s20, s24, 8")
    a(f"s_add_u32 s20, s20, {TEX}")
    a("v_add_u32 v25, s20, v25")
    a("v_lshlrev_b32 v5, 9, v27")
    a("v_lshl_add_u32 v5, v26, 4, v5")
    a("s_lshl_b32 s4, s26, 2")
    a("s_lshl_b32 s5, s23, 1")
    a("s_add_u32 s4, s4, s5")
    a("s_mul_i32 s4, s4, 112*1024")
    a("s_lshl_b32 s5, s25, 13")
    a("s_add_u32 s4, s4, s5")
    a("s_lshl_b32 s5, s24, 11")
    a("s_add_u32 s4, s4, s5")
    a(f"s_add_u32 s4, s4, {WS_ACT}")
    a(f"s_add_u32 s5, s4, {112*1024}")
    def read_list(s):
        c, ks = divmod(s, 2)
        F = FR[s & 1]
        sl = c % NS
        va, oa = (16, sl * STG) if sl < 2 else (17, 0)
        A = [f"ds_read_b128 {r4(F+4*tt)}, v{va} offset:{oa + (tt>>1)*4096 + ks*2048 + (tt&1)*256}" for tt in range(4)]
        B = []
        for m in range(2):
            for fi in range(2):
                vb = (18 if fi == 0 else 21) + sl
                R = F + 16 + 8 * m + 4 * fi
                B.append(f"ds_read_b64_tr_b16 v[{R}:{R+1}], v{vb} offset:{m*16384 + ks*8192}")
                B.append(f"ds_read_b64_tr_b16 v[{R+2}:{R+3}], v{vb} offset:{m*16384 + ks*8192 + 2048}")
        return [A[0], B[0], B[1], A[1], A[2], A[3], B[2], B[3], B[4], B[5], B[6], B[7]]
    def mf_list(F):
        L = []
        need_w = {(0, 0): 3, (0, 1): 8, (1, 0): 10, (1, 1): 12}
        need_t = {0: 1, 1: 4, 2: 5, 3: 6}
        for m in range(2):
            for fi in range(2):
                for tt in range(4):
                    D = ACC + ((m * 2 + fi) * 4 + tt) * 4
                    L.append((f"v_mfma_f32_16x16x32_bf16 {r4(D)}, {r4(F+16+8*m+4*fi)}, {r4(F+4*tt)}, {r4(D)}", max(need_w[(m, fi)], need_t[tt])))
        return L
    a("s_barrier")
    stamp_mid(a, 1 if not FUSED else 6)
    for l in read_list(0): a(l)
    NR = 12
    E = FR[0]
    ext_reads = []
    for tt in range(4): ext_reads.append(f"ds_read_b128 {r4(E+4*tt)}, v24 offset:{tt*256}")
    for s in range(16):
        c, ks = divmod(s, 2)
        last = s == 15
        F = FR[s & 1]
        R = read_list(s + 1) if not last else ext_reads
        done = 0
        if ks == 1 and not last:
            a("s_waitcnt lgkmcnt(0)")
            a("s_barrier")
            done = NR
            if not FUSED: stamp_mid(a, 2 + c)
        ML = mf_list(F)
        issued = 0
        n = len(ML)
        for idx, (txt, need) in enumerate(ML):
            if need > done:
                a(f"s_waitcnt lgkmcnt({min(15, NR - need + issued)})")
                done = need
            a(txt)
            tgt = min(len(R), ((idx + 1) * len(R) * 4 + 3 * n - 1) // (3 * n))
            while issued < tgt:
                a(R[issued]); issued += 1
            if last and idx >= 4 and idx < 12:
                a(f"v_mov_b32 v{E+16+2*(idx-4)}, 0")
                a(f"v_mov_b32 v{E+17+2*(idx-4)}, 0")
    a("s_mov_b64 exec, 0xffff")
    for m in range(2):
        for fi in range(2):
            a(f"ds_read_b64 {r2(E+16+8*m+4*fi)}, v25 offset:{m*1024 + fi*128}")
    a("s_mov_b64 exec, -1")
    a("s_waitcnt lgkmcnt(4)")
    for tt in range(4):
        a(f"v_mov_b32 v{8+2*tt}, v{E+4*tt+2}")
        a(f"v_mov_b32 v{9+2*tt}, v{E+4*tt+3}")
        a(f"v_mov_b32 v{E+4*tt+2}, 0")
        a(f"v_mov_b32 v{E+4*tt+3}, 0")
    a("s_waitcnt lgkmcnt(0)")
    for txt, _ in mf_list(E): a(txt)
    stamp_mid(a, 9 if not FUSED else 7)
    T = FR[1]
    for tt in range(4):
        G = [ACC + (fi * 4 + tt) * 4 + r for fi in range(2) for r in range(4)]
        U = [g + 32 for g in G]
        Tt = T + (tt & 1) * 8
        Pk = T + 16 + tt * 4
        RG, CC = 8 + 2 * tt, 9 + 2 * tt
        for r in range(8): a(f"v_mul_f32 v{G[r]}, v{RG}, v{G[r]}")
        for r in range(8):
            a(f"v_exp_f32 v{Tt+r}, v{G[r]}")
            a(f"v_mul_f32 v{U[r]}, v{U[r]}, v{G[r]}")
        for r in range(8): a(f"v_fma_f32 v{Tt+r}, v{Tt+r}, v{CC}, v{CC}")
        for r in range(8): a(f"v_rcp_f32 v{Tt+r}, v{Tt+r}")
        for r in range(8): a(f"v_mul_f32 v{U[r]}, v{U[r]}, v{Tt+r}")
        for j in range(4): a(f"v_cvt_pk_bf16_f32 v{Pk+j}, v{U[2*j]}, v{U[2*j+1]}")
        a(f"buffer_store_dwordx4 {r4(Pk)}, v5, {sr(S_WS)}, s{4 + (tt>>1)} offen offset:{(tt&1)*256} {SC}")
    if FUSED:
        a("s_waitcnt vmcnt(0)")
        a("s_barrier")
    finish(a, 4, END, 96)
    c = a
    c.label("P5_LOADER")
    c("s_setprio 3")
    c(f"s_cmp_eq_u32 s{S_WAVE}, 8")
    c("s_cbranch_scc0 P5_LB")
    c("v_lshlrev_b32 v12, 4, v1")
    c("s_lshl_b32 s6, s26, 7")
    c(f"s_add_u32 s6, s6, {F4B}")
    poll(c, 6, 16, 14, 7)
    c("s_lshl_b32 s4, s26, 17")
    c(f"s_add_u32 s4, s4, {WS_X1S}")
    c.vm = []
    def astage(st):
        sl = st % NS
        for i in range(16):
            t, k = i >> 2, i & 3
            c(f"s_mov_b32 m0, {sl*STG + i*1024}")
            c(f"s_add_u32 s6, s4, {t*32768 + st*4096 + k*1024}")
            c(f"buffer_load_dwordx4 v12, {sr(S_WS)}, s6 offen {SC} lds", f"S{st}")
    astage(0); astage(1)
    c.wait_vm("S0")
    c("s_barrier")
    astage(2)
    c("s_lshl_b32 s8, s26, 11")
    c(f"s_add_u32 s8, s8, {WS_ST2}")
    P = 32
    for st in range(1, 8):
        c.wait_vm(f"S{st}")
        c("s_barrier")
        if st + 2 < 8: astage(st + 2)
        if st == 1:
            for hf in range(2):
                for p in range(8):
                    c(f"s_add_u32 s9, s8, {p*32768 + hf*1024}")
                    c(f"buffer_load_dwordx4 {r4(P+32*hf+4*p)}, v12, {sr(S_WS)}, s9 offen {SC}", "st")
        if st == 3:
            c.wait_vm("st")
            for hf in range(2):
                Q = P + 32 * hf
                for w in (16, 8, 4, 2):
                    for i in range(w): c(f"v_add_f32 v{Q+i}, v{Q+i}, v{Q+i+w}")
                c(f"v_mul_f32 v{Q+2}, 0x3b000000, v{Q}")
                c(f"v_fma_f32 v{Q+1}, -v{Q}, v{Q+2}, v{Q+1}")
                c(f"v_max_f32 v{Q+1}, 0, v{Q+1}")
            ln_finish(c, [P + 2, P + 34], [P + 1, P + 33], [P + 8, P + 40])
            for hf in range(2):
                Q = P + 32 * hf
                c(f"v_xor_b32 v{Q+2}, 0x80000000, v{Q+2}")
                c(f"v_cvt_pk_bf16_f32 v{Q+4}, v{Q+2}, v{Q+2}")
                c(f"v_cvt_pk_bf16_f32 v{Q+5}, v{Q+1}, v{Q+1}")
                c(f"v_mul_f32 v{Q+6}, {hex(NLOG2E)}, v{Q+8}")
                c(f"v_mul_f32 v{Q+7}, {hex(NLOG2E)}, v{Q+1}")
                c(f"v_add_u32 v13, {TST + hf*1024}, v12")
                c(f"ds_write_b128 v13, {r4(Q+4)}")
            c("s_waitcnt lgkmcnt(0)")
    if FUSED:
        c("s_barrier")
        c("s_lshl_b32 s4, s26, 7")
        c("s_lshl_b32 s5, s25, 2")
        c("s_add_u32 s4, s4, s5")
        c(f"s_add_u32 s4, s4, {F5B}")
        signal(c, 4, 4, 8)
        c(f"s_branch {END}")
    else:
        c("s_endpgm")
    c.label("P5_LB")
    c.vm = []
    c("v_lshrrev_b32 v5, 4, v1")
    c("v_mul_u32_u24 v13, 3584, v5")
    c("v_bfe_u32 v14, v1, 1, 3")
    c("v_xor_b32 v14, v14, v5")
    c("v_lshl_add_u32 v13, v14, 5, v13")
    c("v_and_b32 v14, 1, v1")
    c("v_lshl_add_u32 v13, v14, 4, v13")
    c("v_xor_b32 v12, 128, v13")
    c("s_lshl_b32 s4, s25, 8")
    c(f"s_mov_b32 s5, {A_SZ}")
    def bstage():
        L = uid("P5B")
        c("s_mov_b32 s6, s4")
        c("s_mov_b32 s7, s5")
        c("s_mov_b32 s8, 4")
        c.label(L)
        for i in range(4):
            for m in range(2):
                c(f"s_add_u32 m0, s7, {m*16384 + i*1024}")
                if m == 0: c(f"s_add_u32 s9, s6, {i*4*3584}")
                else: c("s_nop 0")
                c(f"buffer_load_dwordx4 v{13 - (i & 1)}, {sr(S_WG if m == 0 else S_WU)}, s9 offen lds")
        c(f"s_add_u32 s6, s6, {16*3584}")
        c("s_add_u32 s7, s7, 4096")
        c("s_sub_u32 s8, s8, 1")
        c("s_cmp_lg_u32 s8, 0")
        c(f"s_cbranch_scc1 {L}")
        c(f"s_add_u32 s4, s4, {64*3584}")
        c(f"s_add_u32 s5, s5, {STG}")
        c(f"s_cmp_ge_u32 s5, {NS*STG}")
        c(f"s_cselect_b32 s5, {A_SZ}, s5")
    c("s_mov_b32 s10, 8")
    c.label("P5_LBL")
    bstage()
    c("s_sub_u32 s10, s10, 1")
    c(f"s_cmp_ge_u32 s10, {6 if FUSED else 7}")
    c("s_cbranch_scc1 P5_LBL")
    if FUSED:
        c("s_cmp_eq_u32 s10, 5")
        c("s_cbranch_scc0 P5_LBN")
        c("s_waitcnt vmcnt(32)")
        c("s_barrier")
        c.label("P5_LBN")
    c("s_waitcnt vmcnt(32)")
    c("s_barrier")
    c("s_cmp_lg_u32 s10, 0")
    c("s_cbranch_scc1 P5_LBL")
    if FUSED:
        for m in range(2):
            c("s_lshl_b32 s6, s25, 5")
            c(f"s_add_u32 s6, s6, {FEB + m*448}")
            poll(c, 6, 8, 14)
    c("v_lshlrev_b32 v10, 4, v1")
    c("s_lshl_b32 s6, s25, 10")
    c(f"s_add_u32 s6, s6, {WS_EXT}")
    c(f"s_mov_b32 m0, {TEX}")
    c("s_add_u32 s7, s6, 14336")
    c(f"buffer_load_dwordx4 v10, {sr(S_WS)}, s6 offen {SC} lds")
    c(f"s_mov_b32 m0, {TEX + 1024}")
    c("s_nop 0")
    c(f"buffer_load_dwordx4 v10, {sr(S_WS)}, s7 offen {SC} lds")
    c("s_waitcnt vmcnt(0)")
    c("s_barrier")
    c("v_lshlrev_b32 v9, 7, v1")
    c("s_lshl_b32 s6, s27, 16")
    for i in range(8):
        c(f"s_add_u32 s7, s6, {i*8192}")
        c(f"buffer_load_dword v{16+i}, v9, {sr(S_WD)}, s7 offen")
    if FUSED:
        c("s_barrier")
    else:
        c.label("P5_EXIT")
        c("s_endpgm")
    c.label(END)

def p6(a):
    STG = 16384; NS = 7; NSTG = 28
    END = "P6_END"
    tile64_ids(a)
    a(f"s_cmp_ge_u32 s{S_WAVE}, 8")
    a("s_cbranch_scc1 P6_LOADER")
    a(f"s_cmp_ge_u32 s{S_WAVE}, 4")
    a(f"s_cbranch_scc1 {END}")
    a(f"s_and_b32 s23, s{S_WAVE}, 1")
    a(f"s_lshr_b32 s24, s{S_WAVE}, 1")
    a("v_and_b32 v3, 31, v1")
    a("v_lshrrev_b32 v4, 5, v1")
    a("v_lshlrev_b32 v7, 10, v3")
    a("v_lshl_add_u32 v7, v4, 3, v7")
    a("v_lshlrev_b32 v5, 4, v1")
    a("v_lshlrev_b32 v6, 4, v4")
    a("s_lshl_b32 s4, s26, 16")
    a("s_lshl_b32 s5, s23, 15")
    a("s_add_u32 s4, s4, s5")
    a("s_lshl_b32 s5, s25, 12")
    a("s_add_u32 s6, s4, s5")
    a("s_lshl_b32 s5, s24, 11")
    a("s_add_u32 s6, s6, s5")
    a(f"s_add_u32 s6, s6, {WS_X1}")
    a("s_lshl_b32 s5, s25, 7")
    a("s_add_u32 s4, s4, s5")
    a("s_lshl_b32 s5, s24, 6")
    a("s_add_u32 s4, s4, s5")
    a("s_lshl_b32 s7, s25, 8")
    a("s_lshl_b32 s5, s24, 7")
    a("s_add_u32 s7, s7, s5")
    a(f"s_add_u32 s7, s7, {WS_MOD + 4*2560}")
    tile64_addrs(a, 16, 20, 24)
    ACC = 32
    for r in range(ACC, ACC + 16): a(f"v_mov_b32 v{r}, 0")
    FR = [48, 56]
    def reads(A, slot, ks, par):
        F = FR[par]
        hi = int(slot >= 4)
        off = (slot % 4) * STG
        A(f"ds_read_b128 {r4(F)}, v{16+hi} offset:{off + ks*1024}")
        o1 = (ks >> 1) * 4096 + (ks & 1) * 1024
        A(f"ds_read_b64_tr_b16 v[{F+4}:{F+5}], v{20+hi} offset:{off + o1}")
        A(f"ds_read_b64_tr_b16 v[{F+6}:{F+7}], v{20+hi} offset:{off + o1 + 2048}")
    def mf(A, par):
        F = FR[par]
        A(f"v_mfma_f32_32x32x16_bf16 {r16(ACC)}, {r4(F+4)}, {r4(F)}, {r16(ACC)}")
    a("s_barrier")
    stamp_mid(a, 0 if not FUSED else 8)
    reads(a, 0, 0, 0)
    a(f"s_mov_b32 s8, {NSTG // NS}")
    b = a
    b.label("P6_LOOP")
    for sl in range(NS):
        for ks in range(4):
            par = ks & 1
            if ks < 3:
                reads(b, sl, ks + 1, 1 - par)
                b("s_waitcnt lgkmcnt(3)")
            else:
                b("s_waitcnt lgkmcnt(0)")
                if sl == NS - 1:
                    b("s_sub_u32 s8, s8, 1")
                    b("s_cmp_eq_u32 s8, 0")
                    b("s_cbranch_scc1 P6_DONE")
                    b("s_cmp_eq_u32 s8, 1")
                    b("s_cbranch_scc0 P6_NOEP")
                    b(f"buffer_load_dwordx4 v[64:67], v5, {sr(S_WS)}, s6 offen {SC}")
                    b(f"buffer_load_dwordx4 v[68:71], v5, {sr(S_WS)}, s6 offen offset:1024 {SC}")
                    for g in range(4):
                        b(f"buffer_load_dwordx4 v[{72+4*g}:{75+4*g}], v6, {sr(S_WS)}, s7 offen offset:{g*32} {SC}")
                    b.label("P6_NOEP")
                b("s_barrier")
                reads(b, (sl + 1) % NS, 0, 1 - par)
            mf(b, par)
    b("s_branch P6_LOOP")
    c = a
    c.label("P6_DONE")
    mf(c, 1)
    stamp_mid(c, 1 if not FUSED else 9)
    c("s_waitcnt vmcnt(0)")
    for j in range(8):
        c(f"v_lshlrev_b32 v{88+2*j}, 16, v{64+j}")
        c(f"v_and_b32 v{89+2*j}, 0xffff0000, v{64+j}")
    for r in range(16): c(f"v_fma_f32 v{88+r}, v{72+r}, v{ACC+r}, v{88+r}")
    for j in range(8): c(f"v_cvt_pk_bf16_f32 v{48+j}, v{88+2*j}, v{89+2*j}")
    for g in range(4):
        c(f"buffer_store_dwordx2 v[{48+2*g}:{49+2*g}], v7, {sr(S_OUT)}, s4 offen offset:{g*16}")
    stamp_end(c, 5 if not FUSED else 1, S_WSP, 64)
    c("s_endpgm")
    c.label("P6_LOADER")
    c("s_setprio 3")
    c(f"s_cmp_eq_u32 s{S_WAVE}, 8")
    c("s_cbranch_scc0 P6_LB")
    c("v_lshlrev_b32 v10, 4, v1")
    c("s_lshr_b32 s6, s26, 1")
    c("s_lshl_b32 s6, s6, 7")
    c(f"s_add_u32 s6, s6, {F5B}")
    poll(c, 6, 14, 14, 9)
    c("s_mul_i32 s4, s26, 2*112*1024")
    c(f"s_add_u32 s4, s4, {WS_ACT}")
    c("s_mov_b32 s5, 4096")
    c("s_mov_b32 s6, 0")
    c("s_mov_b32 s10, 1024")
    c(f"s_mov_b32 s11, {112*1024 - 3*1024}")
    for q in range(4): c(f"s_mov_b32 s{12+q}, s{S_WS+q}")
    c("s_branch P6_LGO")
    c.label("P6_LB")
    bload64_addr(c, 10)
    c("s_lshl_b32 s4, s25, 7")
    c("s_mov_b32 s5, 65536")
    c("s_mov_b32 s6, 8192")
    c("s_mov_b32 s10, 8192")
    c("s_mov_b32 s11, 8192")
    for q in range(4): c(f"s_mov_b32 s{12+q}, s{S_WD+q}")
    c.label("P6_LGO")
    c("s_mov_b32 s15, 0x00020000")
    def stage():
        c("s_mov_b32 s9, s4")
        for i in range(8):
            c(f"s_add_u32 m0, s7, {i*1024}")
            if i == 0: c("s_nop 0")
            else: c(f"s_add_u32 s9, s9, s{11 if i == 4 else 10}")
            c(f"buffer_load_dwordx4 v10, s[12:15], s9 offen {SC} lds")
        c("s_add_u32 s4, s4, s5")
        c(f"s_add_u32 s7, s7, {STG}")
        c(f"s_cmp_ge_u32 s7, {NS*STG}")
        c("s_cselect_b32 s7, s6, s7")
    c("s_mov_b32 s7, s6")
    c(f"s_mov_b32 s8, {NS}")
    c.label("P6_LPRE")
    stage()
    c("s_sub_u32 s8, s8, 1")
    c("s_cmp_lg_u32 s8, 0")
    c("s_cbranch_scc1 P6_LPRE")
    c(f"s_waitcnt vmcnt({8*(NS-1)})")
    c("s_barrier")
    c(f"s_mov_b32 s8, {NSTG - NS}")
    c.label("P6_LMAIN")
    c(f"s_waitcnt vmcnt({8*(NS-2)})")
    c("s_barrier")
    stage()
    c("s_sub_u32 s8, s8, 1")
    c("s_cmp_lg_u32 s8, 0")
    c("s_cbranch_scc1 P6_LMAIN")
    for k in range(NS - 1):
        c(f"s_waitcnt vmcnt({8*(NS-2-k)})")
        c("s_barrier")
    if FUSED and STAMP:
        c(f"s_cmp_eq_u32 s{S_WAVE}, 8")
        c(f"s_cbranch_scc0 {END}")
        stamp_end(c, 2, S_WSP, 16)
    c.label(END)
    c("s_endpgm")
```

```python
import sys, os
sys.path.insert(0, os.path.dirname(os.path.abspath(__file__)))
from common import *
import phases, gen_k1

LDS = 163840
def make_kernel(name, plist, fused):
    phases.FUSED = fused
    phases.SC = "sc1" if fused else ""
    phases.SCL = os.environ.get("SCL", "sc1") if fused else ""
    a = Asm()
    prologue(a, name + "_EXIT")
    for p in plist:
        a.vm = []
        p(a)
    a.label(name + "_EXIT")
    a("s_endpgm")
    return fix_hazards(a.lines), phases.NV

def build(path, mode):
    ks = [("k1_kernel", gen_k1.k1, gen_k1.NWG, 256, 2048)]
    P = [phases.p2, phases.p3, phases.p4, phases.p5, phases.p6]
    if mode == "split":
        for i, p in enumerate(P):
            ks.append((f"k{i+2}_kernel", (lambda p=p, i=i: make_kernel(f"K{i+2}", [p], False)), 256, 640, LDS))
    elif mode == "fused":
        ks.append(("k2_kernel", lambda: make_kernel("KB", P, True), 256, 640, LDS))
    else:
        phases.ONE = True
        ks = [(NAME + "_kernel", lambda: make_kernel("KB", P, True), 256, 640, LDS)]
    hdr = open(os.path.join(os.path.dirname(os.path.abspath(__file__)), "header.txt")).read()
    out = [hdr.rstrip("\n")]
    for (n, f, g, b, lds) in ks:
        if mode == "one" and not os.environ.get("ASLIST"):
            out.append(f"; @launch grid=({g},1,1) block=({b},1,1) lds={lds}")
        else:
            out.append(f"; @launch kernel={n} grid=({g},1,1) block=({b},1,1) lds={lds}")
    out.append('.amdgcn_target "amdgcn-amd-amdhsa--gfx950"')
    out.append(".text")
    kds = []
    for (n, f, g, b, lds) in ks:
        lines, nv = f()
        out.append(kernel_text(n, lines, nv))
        kds.append(kd_text(n, nv))
    out.append("CODE_END:")
    out.append("    s_endpgm")
    out.append('.section .rodata,"a"')
    out += kds
    open(path, "w").write("\n".join(out) + "\n")

if __name__ == "__main__":
    path = sys.argv[1] if len(sys.argv) > 1 else f"cdna_kernels/{NAME}.s"
    build(path, os.environ.get("MODE", "one"))
```

```python
import sys, os, struct
sys.path.insert(0, os.path.dirname(os.path.abspath(__file__)))
from asmlib import *

NAME = "adaLN_cond__softmax_full_mha__swiglu_ffn__prompt"
def f2h(x): return hex(struct.unpack('<I', struct.pack('<f', x))[0])

WS_MOD = 0x0
WS_ST1 = 0x4000
WS_EXT = 0x8000
WS_AB = 0xF000
WS_ST2 = 0x10000
WS_FLG = 0x80000
WS_Q = 0x100000
WS_K = 0x300000
WS_V = 0x500000
WS_O = 0x700000
WS_X1 = 0x900000
WS_X1S = 0xB00000
WS_ACT = 0xD00000
WS_SIZE = 0x1400000

KA_X, KA_WQKV, KA_WO, KA_BX, KA_WG, KA_WU, KA_WD, KA_C, KA_WMOD, KA_OUT, KA_DBG, KA_WS = [8 * i for i in range(12)]
LOG2E = 0x3fb8aa3b
NLOG2E = 0xbfb8aa3b

S_X, S_WQKV, S_WO, S_WG, S_WU, S_WD, S_WS, S_OUT = 28, 32, 36, 40, 44, 48, 52, 56
S_WAVE = 60
S_WSP = 62
S_WM = 96
S_KA = 64
def sr(x): return f"s[{x}:{x+3}]"
def r4(x): return f"v[{x}:{x+3}]"
def r2(x): return f"v[{x}:{x+1}]"
def r16(x): return f"v[{x}:{x+15}]"

def srd(a, d, b, nbytes):
    a(f"s_mov_b32 s{d}, s{b}")
    a(f"s_and_b32 s{d+1}, s{b+1}, 0xffff")
    a(f"s_mov_b32 s{d+2}, {hex(nbytes)}")
    a(f"s_mov_b32 s{d+3}, 0x00020000")

def allreduce_add(a, regs, tmps):
    for ror in (1, 2, 4, 8):
        for r in regs:
            a(f"v_add_f32_dpp v{r}, v{r}, v{r} row_ror:{ror} row_mask:0xf bank_mask:0xf")
    for sw in ("v_permlane16_swap_b32", "v_permlane32_swap_b32"):
        for r, t in zip(regs, tmps): a(f"v_mov_b32 v{t}, v{r}")
        for r, t in zip(regs, tmps): a(f"{sw} v{r}, v{t}")
        for r, t in zip(regs, tmps): a(f"v_add_f32 v{r}, v{r}, v{t}")

def bf16r(a, r):
    a(f"v_cvt_pk_bf16_f32 v{r}, v{r}, v{r}")
    a(f"v_lshlrev_b32 v{r}, 16, v{r}")

def ln_finish(a, means, sumsq, outs):
    for m, q in zip(means, sumsq): a(f"v_mul_f32 v{q}, 0x3b000000, v{q}")
    for m, q in zip(means, sumsq): a(f"v_cvt_pk_bf16_f32 v{q}, v{q}, v{m}")
    for m, q in zip(means, sumsq):
        a(f"v_and_b32 v{m}, 0xffff0000, v{q}")
        a(f"v_lshlrev_b32 v{q}, 16, v{q}")
    for m, q in zip(means, sumsq): a(f"v_add_f32 v{q}, 0x3727c5ac, v{q}")
    for q in sumsq: bf16r(a, q)
    for q in sumsq: a(f"v_sqrt_f32 v{q}, v{q}")
    for q in sumsq: bf16r(a, q)
    for q, o in zip(sumsq, outs): a(f"v_rcp_f32 v{o}, v{q}")
    for m, o in zip(means, outs): a(f"v_mul_f32_e64 v{o+1}, -v{m}, v{o}")

STAMP = bool(int(os.environ.get("STAMP", "0")))
WS_STAMP = 0x2000000
NMID = 12
def stamp_start(a):
    if STAMP:
        for i in range(NMID): a(f"s_mov_b32 s{66+2*i}, 0")
        a("s_memrealtime s[90:91]")
def stamp_mid(a, i):
    if STAMP: a(f"s_memrealtime s[{66+2*i}:{67+2*i}]")
def stamp_cyc(a, i):
    if STAMP: a(f"s_memtime s[{66+2*i}:{67+2*i}]")
def stamp_end(a, kidx, ws_base_sgpr, vt, wait=True):
    if not STAMP: return
    if wait: a("s_waitcnt vmcnt(0)")
    a("s_memrealtime s[92:93]")
    a(f"v_lshrrev_b32 v{vt}, 6, v0")
    a(f"s_lshl_b32 s94, s2, 4")
    a(f"s_add_u32 s94, s94, {kidx*1024*16}")
    a(f"v_add_u32 v{vt}, s94, v{vt}")
    a(f"v_lshlrev_b32 v{vt}, 6, v{vt}")
    a(f"v_add_u32 v{vt}, {WS_STAMP}, v{vt}")
    a("s_waitcnt lgkmcnt(0)")
    a(f"v_mov_b32 v{vt+2}, s90")
    a(f"v_mov_b32 v{vt+3}, s92")
    for i in range(NMID): a(f"v_mov_b32 v{vt+4+i}, s{66+2*i}")
    a("s_getreg_b32 s94, hwreg(HW_REG_XCC_ID)")
    a(f"v_mov_b32 v{vt+16}, s94")
    a("s_getreg_b32 s94, hwreg(HW_REG_HW_ID)")
    a(f"v_mov_b32 v{vt+17}, s94")
    if os.environ.get("DBGST") and kidx == 1:
        a(f"s_cmp_eq_u32 s2, {os.environ['DBGST']}")
        a("s_cbranch_scc0 DBG_SKIP")
        a(f"s_cmp_eq_u32 s{S_WAVE}, 0")
        a("s_cbranch_scc0 DBG_SKIP")
        for i in range(3, 16): a(f"v_subrev_u32 v{vt+i}, s90, v{vt+i}")
        a(f"v_mov_b32 v{vt+1}, 0")
        a("s_mov_b64 exec, 1")
        for i in range(3, 16):
            a(f"global_store_dword v{vt+1}, v{vt+i}, s[{S_KA}:{S_KA+1}] offset:{4*(i-1)}")
        a("s_endpgm")
        a.label("DBG_SKIP")
    a("s_mov_b64 exec, 1")
    for q in range(4):
        a(f"global_store_dwordx4 v{vt}, v[{vt+2+4*q}:{vt+5+4*q}], s[{ws_base_sgpr}:{ws_base_sgpr+1}] offset:{16*q}")
    a("s_mov_b64 exec, -1")

def prologue(a, endlabel):
    a("s_cmp_ge_u32 s2, 256")
    a(f"s_cbranch_scc1 {endlabel}")
    stamp_start(a)
    a("s_load_dwordx16 s[4:19], s[0:1], 0")
    a("s_load_dwordx8 s[20:27], s[0:1], 64")
    a("v_and_b32 v1, 63, v0")
    a("v_lshrrev_b32 v2, 6, v0")
    a("s_nop 0")
    a(f"v_readfirstlane_b32 s{S_WAVE}, v2")
    a("s_waitcnt lgkmcnt(0)")
    srd(a, S_X, 4, 2048 * 512 * 2)
    srd(a, S_WQKV, 6, 512 * 1536 * 2)
    srd(a, S_WO, 8, 512 * 512 * 2)
    srd(a, S_WG, 12, 512 * 1792 * 2)
    srd(a, S_WU, 14, 512 * 1792 * 2)
    srd(a, S_WD, 16, 1792 * 512 * 2)
    srd(a, S_OUT, 22, 2048 * 512 * 2)
    srd(a, S_WS, 26, WS_SIZE)
    a(f"s_mov_b64 s[{S_WSP}:{S_WSP+1}], s[26:27]")
    srd(a, S_WM, 20, 512 * 3072 * 2)
    a(f"s_mov_b64 s[{S_KA}:{S_KA+1}], s[24:25]")
```

```python
from common import *

NV = 168
SC = ""
FUSED = False
SCL = ""
SLEEP = int(os.environ.get("SLEEP", "0"))
POLLF = os.environ.get("POLLF", "sc1")
NPOLL = int(os.environ.get("NPOLL", "2"))
CYC = os.environ.get("CYC", "")
ONE = False

def F2(hg): return WS_FLG + hg * 128
FSH = int(os.environ.get("FSH", "5"))
F2B, F3B, F4B, F5B, FEB = 0, 1024, 2048, 4096, 6144
FLG_BYTES = 8192

_uid = [0]
def uid(p):
    _uid[0] += 1
    return f"{p}_{_uid[0]}"

def poll(c, s_off, n, vt, st=None, need=None, setup=True):
    if not FUSED: return
    if setup:
        c(f"s_lshl_b32 s{s_off}, s{s_off}, {FSH}")
        c(f"s_add_u32 s{s_off}, s{s_off}, {WS_FLG}")
        c(f"v_min_u32 v{vt}, {n-1}, v1")
        c(f"v_lshlrev_b32 v{vt}, {2+FSH}, v{vt}")
    poll_loop(c, sr(S_WS), f"s{s_off}", vt, need)
    if st is not None: stamp_mid(c, st)

def poll_loop(c, srdtxt, soff, vt, need=None):
    L = uid("POLL"); E = uid("POLLE")
    NP = NPOLL
    c("s_mov_b32 s95, 0x20000")
    c("s_waitcnt vmcnt(0)")
    for q in range(NP - 1):
        c(f"buffer_load_dword v{160+q}, v{vt}, {srdtxt}, {soff} offen {POLLF}")
        c(f"s_sleep {SLEEP}")
    c.label(L)
    for q in range(NP):
        c(f"buffer_load_dword v{160+(q+NP-1)%NP}, v{vt}, {srdtxt}, {soff} offen {POLLF}")
        c(f"s_waitcnt vmcnt({NP-1})")
        c(f"v_cmp_eq_u32 vcc, 0, v{160+q}")
        if need is None:
            c(f"s_cbranch_vccz {E}")
        else:
            c(f"s_and_b32 s94, vcc_lo, s{need}")
            c(f"s_cbranch_scc0 {E}")
        c(f"s_sleep {SLEEP}")
    c("s_sub_u32 s95, s95, 1")
    c("s_cmp_lg_u32 s95, 0")
    c(f"s_cbranch_scc1 {L}")
    c.label(E)

def poll_async(c, s_off, vt, tag=None):
    if FUSED: c(f"buffer_load_dword v165, v{vt}, {sr(S_WS)}, s{s_off} offen {POLLF}", tag)
def poll_finish(c, s_off, vt):
    if not FUSED: return
    E = uid("POLLF")
    c("v_cmp_eq_u32 vcc, 0, v165")
    c(f"s_cbranch_vccz {E}")
    poll_loop(c, sr(S_WS), f"s{s_off}", vt)
    c.label(E)

def signal(c, s_off, vt, st=None):
    if not FUSED: return
    if st is not None: stamp_mid(c, st)
    c(f"s_lshl_b32 s{s_off}, s{s_off}, {FSH}")
    c(f"s_add_u32 s{s_off}, s{s_off}, {WS_FLG}")
    c(f"v_mov_b32 v{vt}, 0")
    c(f"v_mov_b32 v{vt+1}, 1")
    c("s_mov_b64 exec, 1")
    c(f"buffer_store_dword v{vt+1}, v{vt}, {sr(S_WS)}, s{s_off} offen sc1")
    c("s_mov_b64 exec, -1")

def barriers(c, n):
    if n <= 3:
        for _ in range(n): c("s_barrier")
        return
    L = uid("BAR")
    c(f"s_mov_b32 s61, {n}")
    c.label(L)
    c("s_barrier")
    c("s_sub_u32 s61, s61, 1")
    c("s_cmp_lg_u32 s61, 0")
    c(f"s_cbranch_scc1 {L}")

def finish(c, kidx, endlabel, vt=8):
    if FUSED:
        c(f"s_branch {endlabel}")
    else:
        stamp_end(c, kidx, S_WSP, vt)
        c("s_endpgm")


F1B = 7168

def silu_frags(c, lds_tmp):
    c(f"s_load_dwordx2 s[8:9], s[0:1], {KA_C}")
    c("v_lshlrev_b32 v20, 4, v1")
    c("s_waitcnt lgkmcnt(0)")
    c("global_load_dwordx4 v[96:99], v20, s[8:9]", "c")
    return
def silu_frags2(c, lds_tmp):
    c.wait_vm("c")
    for d in range(4):
        c(f"v_lshlrev_b32 v{100+2*d}, 16, v{96+d}")
        c(f"v_and_b32 v{101+2*d}, 0xffff0000, v{96+d}")
    for i in range(8): c(f"v_mul_f32 v{108+i}, {hex(NLOG2E)}, v{100+i}")
    for i in range(8): c(f"v_exp_f32 v{108+i}, v{108+i}")
    for i in range(8): c(f"v_add_f32 v{108+i}, 1.0, v{108+i}")
    for i in range(8): c(f"v_rcp_f32 v{108+i}, v{108+i}")
    for i in range(8): c(f"v_mul_f32 v{100+i}, v{100+i}, v{108+i}")
    for d in range(4): c(f"v_cvt_pk_bf16_f32 v{96+d}, v{100+2*d}, v{101+2*d}")
    c(f"v_add_u32 v20, {lds_tmp}, v20")
    c("ds_write_b128 v20, v[96:99]")
    c("v_lshrrev_b32 v21, 4, v1")
    c("v_lshlrev_b32 v21, 4, v21")
    c(f"v_add_u32 v21, {lds_tmp}, v21")
    c("s_waitcnt lgkmcnt(0)")
    for i in range(16): c(f"ds_read_b128 {r4(32+4*i)}, v21 offset:{64*i}")

def colsum_addr(c, stride, lds):
    c("v_lshrrev_b32 v9, 1, v1")
    c(f"v_mul_u32_u24 v9, {stride}, v9")
    c("v_and_b32 v10, 1, v1")
    c("v_lshl_add_u32 v9, v10, 4, v9")
    c("v_lshrrev_b32 v11, 4, v1")
    c("v_bfe_u32 v13, v1, 2, 2")
    c("v_lshl_add_u32 v13, v11, 3, v13")
    c("v_lshlrev_b32 v13, 5, v13")
    c("v_and_b32 v14, 3, v1")
    c("v_lshl_add_u32 v13, v14, 3, v13")
    c(f"v_add_u32 v13, {lds}, v13")
    for r in range(4): c(f"v_mov_b32 v{16+r}, 0")
def colsum_dma(c, srdreg, s_off, stride, lds, k0, n):
    for i in range(n):
        c(f"s_mov_b32 m0, {lds + i*1024}")
        c(f"s_add_u32 s11, s{s_off}, {(k0+i)*32*stride}")
        c(f"buffer_load_dwordx4 v9, {sr(srdreg)}, s11 offen lds", "cw")
def colsum_mma(c, k0, i0):
    for i in range(8):
        c(f"ds_read_b64_tr_b16 v[{96+4*i}:{97+4*i}], v13 offset:{(i0+i)*1024}")
        c(f"ds_read_b64_tr_b16 v[{98+4*i}:{99+4*i}], v13 offset:{(i0+i)*1024+128}")
    c("s_waitcnt lgkmcnt(0)")
    for i in range(8):
        c(f"v_mfma_f32_16x16x32_bf16 v[16:19], {r4(32+4*(k0+i))}, {r4(96+4*i)}, v[16:19]")

def mod_store(c, s_blk):
    L1 = uid("MODA"); L2 = uid("MODB")
    bf16r(c, 16)
    c(f"s_lshr_b32 s8, s{s_blk}, 5")
    c("s_lshl_b32 s9, s8, 2")
    c("s_lshr_b32 s10, 0x010010, s9")
    c("s_and_b32 s10, s10, 1")
    c("s_cmp_eq_u32 s10, 0")
    c(f"s_cbranch_scc1 {L1}")
    c("v_add_f32 v16, 1.0, v16")
    bf16r(c, 16)
    c.label(L1)
    c("v_lshlrev_b32 v10, 2, v1")
    c("v_lshlrev_b32 v11, 1, v1")
    c(f"s_lshl_b32 s10, s{s_blk}, 6")
    c("s_mov_b64 exec, 0xffff")
    c(f"buffer_store_dword v16, v10, {sr(S_WS)}, s10 offen offset:{WS_MOD} sc1")
    c("s_lshr_b32 s8, 0x701723, s9")
    c("s_and_b32 s8, s8, 7")
    c("s_cmp_eq_u32 s8, 7")
    c(f"s_cbranch_scc1 {L2}")
    c("s_lshl_b32 s8, s8, 10")
    c(f"s_and_b32 s9, s{s_blk}, 31")
    c("s_lshl_b32 s9, s9, 5")
    c("s_add_u32 s8, s8, s9")
    c(f"s_add_u32 s8, s8, {WS_AB}")
    c(f"buffer_store_short_d16_hi v16, v11, {sr(S_WS)}, s8 offen sc1")
    c.label(L2)
    c("s_mov_b64 exec, -1")

def poll_srd(c, srdreg, s_off, n, vt, st=None):
    c(f"v_lshlrev_b32 v{vt}, 2, v1")
    c(f"v_min_u32 v{vt}, {4*(n-1)}, v{vt}")
    poll_loop(c, sr(srdreg), s_off, vt)
    if st is not None: stamp_mid(c, st)

def p2(a):
    A_STG = 8192; B_BASE = 65536; B_SLOT = 24576; NSB = 4
    XR, AB, TMP, ACC, FR = 8, 52, 68, 80, [104, 124]
    SCR = B_BASE + 3 * B_SLOT
    END = "P2_END"
    a("s_and_b32 s25, s2, 1")
    a("s_lshl_b32 s25, s25, 2")
    a("s_bfe_u32 s26, s2, 0x20003")
    a("s_add_u32 s25, s25, s26")
    a("s_bfe_u32 s26, s2, 0x20001")
    a("s_lshl_b32 s26, s26, 3")
    a("s_lshr_b32 s27, s2, 5")
    a("s_add_u32 s26, s26, s27")
    a(f"s_cmp_ge_u32 s{S_WAVE}, 8")
    a("s_cbranch_scc1 P2_LOADER")
    a("v_lshlrev_b32 v42, 4, v1")
    a("s_lshl_b32 s27, s26, 16")
    a(f"s_lshl_b32 s20, s{S_WAVE}, 13")
    a("s_add_u32 s27, s27, s20")
    a("s_add_u32 s20, s27, 4096")
    if ONE:
        srd(a, 4, S_KA, 256)
        a("s_barrier")
    else:
        a("s_lshr_b32 s21, s27, 7")
        a(f"s_add_u32 s21, s21, {WS_ST1}")
        a(f"s_buffer_load_dwordx16 s[4:19], {sr(S_WS)}, s21")
        a(f"s_mov_b32 s22, {WS_AB + 2048}")
        a(f"buffer_load_dwordx4 {r4(FR[0])}, v42, {sr(S_WS)}, s22 offen", "ab")
        a(f"buffer_load_dwordx4 {r4(FR[0]+4)}, v42, {sr(S_WS)}, s22 offen offset:1024", "ab")
    for j in range(8):
        a(f"buffer_load_dwordx4 {r4(XR+4*j)}, v42, {sr(S_X)}, s{27 if j < 4 else 20} offen offset:{1024*(j%4)}", f"x{j}")
    if ONE:
        a(f"v_mov_b32 v49, {SCR + 20480}")
        a("v_mov_b32 v50, 0")
        a("ds_write_b32 v49, v50")
        a("ds_write_b32 v49, v50 offset:4")
        a("s_waitcnt lgkmcnt(0)")
    a("s_barrier")
    a("v_lshrrev_b32 v54, 3, v1")
    a("v_lshlrev_b32 v43, 13, v54")
    a("v_and_b32 v55, 7, v1")
    a(f"s_and_b32 s23, s{S_WAVE}, 1")
    a("s_lshl_b32 s22, s23, 2")
    a("v_xor_b32 v55, s22, v55")
    a("v_lshl_add_u32 v43, v55, 4, v43")
    a(f"s_lshl_b32 s22, s{S_WAVE}, 10")
    a("v_add_u32 v43, s22, v43")
    for q in range(1, 4): a(f"v_xor_b32 v{43+q}, {q*16}, v43")
    a("v_and_b32 v54, 15, v1")
    a("v_lshrrev_b32 v55, 4, v1")
    a("v_bfe_u32 v56, v54, 1, 3")
    a("v_xor_b32 v56, v56, v55")
    a("v_lshlrev_b32 v40, 7, v54")
    a("v_lshl_add_u32 v40, v56, 4, v40")
    a("s_lshl_b32 s22, s23, 12")
    a("v_add_u32 v40, s22, v40")
    a("v_xor_b32 v41, 64, v40")
    a("v_bfe_u32 v56, v1, 2, 2")
    a("v_lshl_add_u32 v56, v55, 3, v56")
    a("v_mul_u32_u24 v47, 384, v56")
    a("v_bfe_u32 v57, v1, 3, 2")
    a(f"s_lshr_b32 s24, s{S_WAVE}, 1")
    a("v_xor_b32 v57, s24, v57")
    a("v_lshl_add_u32 v47, v57, 5, v47")
    a("v_and_b32 v58, 3, v1")
    a("v_lshl_add_u32 v47, v58, 3, v47")
    a(f"v_add_u32 v47, {B_BASE}, v47")
    a(f"v_add_u32 v48, {2*B_SLOT}, v47")
    if ONE:
        XF = 80
        S1, S2, T1 = 144, 152, 160
        for j in range(8):
            x = XR + 4 * j; f = XF + 8 * j
            a.wait_vm(f"x{j}")
            for d in range(4):
                a(f"v_lshlrev_b32 v{f+2*d}, 16, v{x+d}")
                a(f"v_and_b32 v{f+1+2*d}, 0xffff0000, v{x+d}")
            a(f"v_add_f32 v{S1+j}, v{f}, v{f+1}")
            a(f"v_add_f32 v{T1+j}, v{f+2}, v{f+3}")
            a(f"v_add_f32 v{S1+j}, v{S1+j}, v{f+4}")
            a(f"v_add_f32 v{T1+j}, v{T1+j}, v{f+5}")
            a(f"v_add_f32 v{S1+j}, v{S1+j}, v{f+6}")
            a(f"v_add_f32 v{T1+j}, v{T1+j}, v{f+7}")
            a(f"v_add_f32 v{S1+j}, v{S1+j}, v{T1+j}")
        allreduce_add(a, list(range(S1, S1 + 8)), list(range(T1, T1 + 8)))
        for j in range(8): a(f"v_mul_f32 v{S1+j}, 0x3b000000, v{S1+j}")
        for j in range(8):
            f = XF + 8 * j
            for d in range(8): a(f"v_sub_f32 v{f+d}, v{f+d}, v{S1+j}")
            a(f"v_mul_f32 v{S2+j}, v{f}, v{f}")
            for d in range(1, 8): a(f"v_fmac_f32 v{S2+j}, v{f+d}, v{f+d}")
        allreduce_add(a, list(range(S2, S2 + 8)), list(range(T1, T1 + 8)))
        for j in range(8): a(f"v_mov_b32 v{T1+j}, v{S1+j}")
        ln_finish(a, list(range(S1, S1 + 8)), list(range(S2, S2 + 8)), [XR + 2 * j for j in range(8)])
        for j in range(8):
            a(f"v_sub_f32 v{T1+j}, v{T1+j}, v{S1+j}")
            a(f"v_mul_f32 v{T1+j}, v{T1+j}, v{XR+2*j}")
        for j in range(8):
            f = XF + 8 * j
            for d in range(8): a(f"v_fma_f32 v{f+d}, v{f+d}, v{XR+2*j}, v{T1+j}")
        if not CYC: stamp_mid(a, 10)
        a(f"s_cmp_eq_u32 s{S_WAVE}, 0")
        a("s_cbranch_scc0 P2_WAITL")
        if os.environ.get("F1MODE", "last") == "last":
            a("s_mov_b32 s22, 128")
            poll_srd(a, 4, "s22", 1, 24, None if CYC else 11)
        else:
            poll_srd(a, 4, "0", 64, 24, 11)
        a(f"s_mov_b32 s22, {WS_AB + 2048}")
        a(f"s_mov_b32 m0, {SCR + 18432}")
        a("s_nop 0")
        a(f"buffer_load_dwordx4 v42, {sr(S_WS)}, s22 offen sc1 lds")
        a(f"buffer_load_dwordx4 v42, {sr(S_WS)}, s22 offen offset:1024 sc1 lds")
        a("v_mov_b32 v24, 1")
        a("s_waitcnt vmcnt(0)")
        a("ds_write_b32 v49, v24")
        a.label("P2_WAITL")
        a("s_mov_b32 s95, 0x400000")
        a.label("P2_WAITL2")
        a("ds_read_b32 v24, v49")
        a("s_waitcnt lgkmcnt(0)")
        a("v_cmp_eq_u32 vcc, 1, v24")
        a("s_sub_u32 s95, s95, 1")
        a("s_cmp_eq_u32 s95, 0")
        a("s_cbranch_scc1 P2_GOTL")
        a("s_cbranch_vccnz P2_GOTL")
        a("s_sleep 1")
        a("s_branch P2_WAITL2")
        a.label("P2_GOTL")
        a(f"v_add_u32 v50, {SCR + 18432}, v42")
        a("ds_read_b128 v[24:27], v50")
        a("ds_read_b128 v[28:31], v50 offset:1024")
        a("s_waitcnt lgkmcnt(0)")
        for q in range(8):
            a(f"v_lshlrev_b32 v{AB+2*q}, 16, v{24+q}")
            a(f"v_and_b32 v{AB+2*q+1}, 0xffff0000, v{24+q}")
        for j in range(8):
            f = XF + 8 * j; x = XR + 4 * (j & 3)
            for d in range(8): a(f"v_fma_f32 v{f+d}, v{f+d}, v{AB+d}, v{AB+8+d}")
            for d in range(4): a(f"v_cvt_pk_bf16_f32 v{x+d}, v{f+2*d}, v{f+1+2*d}")
            a(f"ds_write_b128 v{43 + (j>>1)}, {r4(x)} offset:{j*128}")
        for r in range(ACC, ACC + 24): a(f"v_mov_b32 v{r}, 0")
    else:
        for r in range(ACC, ACC + 24): a(f"v_mov_b32 v{r}, 0")
        a.wait_vm("ab", "lgkmcnt(0)")
        for q in range(8):
            a(f"v_lshlrev_b32 v{AB+2*q}, 16, v{FR[0]+q}")
            a(f"v_and_b32 v{AB+2*q+1}, 0xffff0000, v{FR[0]+q}")
        if not FUSED: stamp_mid(a, 0)
        for j in range(8):
            x = XR + 4 * j
            a.wait_vm(f"x{j}")
            a(f"v_mov_b32 v3, s{5+2*j}")
            for d in range(4):
                a(f"v_lshlrev_b32 v{TMP+2*d}, 16, v{x+d}")
                a(f"v_and_b32 v{TMP+1+2*d}, 0xffff0000, v{x+d}")
            for d in range(8): a(f"v_fma_f32 v{TMP+d}, v{TMP+d}, s{4+2*j}, v3")
            for d in range(8): a(f"v_fma_f32 v{TMP+d}, v{TMP+d}, v{AB+d}, v{AB+8+d}")
            for d in range(4): a(f"v_cvt_pk_bf16_f32 v{x+d}, v{TMP+2*d}, v{TMP+1+2*d}")
            a(f"ds_write_b128 v{43 + (j>>1)}, {r4(x)} offset:{j*128}")
    def read_list(s):
        c, ks = divmod(s, 2)
        F = FR[s & 1]
        sb = c % NSB
        vb = 47 + sb // 2
        ob = (sb % 2) * B_SLOT + ks * 32 * 384
        A = [f"ds_read_b128 {r4(F+4*tt)}, v{40+ks} offset:{c*A_STG + tt*2048}" for tt in range(2)]
        B = []
        for seg in range(3):
            r = F + 8 + seg * 4
            B.append(f"ds_read_b64_tr_b16 v[{r}:{r+1}], v{vb} offset:{ob + seg*128}")
            B.append(f"ds_read_b64_tr_b16 v[{r+2}:{r+3}], v{vb} offset:{ob + seg*128 + 4*384}")
        return [A[0], B[0], B[1], A[1], B[2], B[3], B[4], B[5]]
    def mf_list(s):
        F = FR[s & 1]
        L = []
        for seg in range(3):
            for tt in range(2):
                A = F + tt * 4; B = F + 8 + seg * 4; D = ACC + seg * 8 + tt * 4
                need = max([3, 6, 8][seg], [1, 4][tt])
                if seg < 2: L.append((f"v_mfma_f32_16x16x32_bf16 {r4(D)}, {r4(B)}, {r4(A)}, {r4(D)}", need))
                else: L.append((f"v_mfma_f32_16x16x32_bf16 {r4(D)}, {r4(A)}, {r4(B)}, {r4(D)}", need))
        return L
    a("s_waitcnt lgkmcnt(0)")
    a("s_barrier")
    stamp_mid(a, 1 if not FUSED else 0)
    if CYC == "p2": stamp_cyc(a, 10)
    for l in read_list(0): a(l)
    NR = 8
    for s in range(16):
        c, ks = divmod(s, 2)
        last = s == 15
        R = read_list(s + 1) if not last else []
        done = 0
        if ks == 1 and not last:
            a("s_waitcnt lgkmcnt(0)")
            a("s_barrier")
            done = NR
        issued = 0
        for idx, (txt, need) in enumerate(mf_list(s)):
            if need > done:
                a(f"s_waitcnt lgkmcnt({min(15, NR - need + issued)})")
                done = need
            a(txt)
            tgt = min(len(R), 2 * (idx + 1))
            while issued < tgt:
                a(R[issued]); issued += 1
    stamp_mid(a, 3 if not FUSED else 1)
    if CYC == "p2": stamp_cyc(a, 11)
    a("s_lshl_b32 s20, s25, 2")
    a("s_add_u32 s20, s20, s24")
    a("s_lshl_b32 s20, s20, 16")
    a("s_lshl_b32 s21, s26, 11")
    a("s_add_u32 s20, s20, s21")
    a("s_lshl_b32 s21, s23, 10")
    a("s_add_u32 s20, s20, s21")
    a(f"s_add_u32 s4, s20, {WS_Q}")
    a(f"s_add_u32 s5, s20, {WS_K}")
    a(f"s_add_u32 s6, s20, {WS_V}")
    a("v_and_b32 v54, 15, v1")
    a("v_lshrrev_b32 v55, 4, v1")
    a("v_lshlrev_b32 v56, 4, v54")
    a("v_lshrrev_b32 v58, 1, v55")
    a("v_lshl_add_u32 v56, v58, 9, v56")
    a("v_and_b32 v58, 1, v55")
    a("v_lshl_add_u32 v56, v58, 3, v56")
    a("v_lshlrev_b32 v57, 4, v54")
    a("v_lshl_add_u32 v57, v58, 8, v57")
    a("v_lshrrev_b32 v58, 1, v55")
    a("v_lshl_add_u32 v57, v58, 3, v57")
    qs = f2h(0.25 * 1.4426950408889634)
    for r in range(ACC, ACC + 8): a(f"v_mul_f32 v{r}, {qs}, v{r}")
    for seg in (1, 2, 0):
        for tt in range(2):
            D = ACC + seg * 8 + tt * 4
            P = 8 + (seg * 2 + tt) * 2
            a(f"v_cvt_pk_bf16_f32 v{P}, v{D}, v{D+1}")
            a(f"v_cvt_pk_bf16_f32 v{P+1}, v{D+2}, v{D+3}")
            a(f"buffer_store_dwordx2 v[{P}:{P+1}], v{56 if seg < 2 else 57}, {sr(S_WS)}, s{4+seg} offen offset:{tt*(256 if seg < 2 else 512)} {SC}")
    if FUSED:
        a("s_waitcnt vmcnt(0)")
        a("s_barrier")
    finish(a, 1, END, 120)
    c = a
    c.label("P2_LOADER")
    c("s_setprio 3")
    c.vm = []
    if ONE:
        c(f"s_cmp_eq_u32 s{S_WAVE}, 9")
        c("s_cbranch_scc0 P2_NOTOUCH")
        c("v_lshrrev_b32 v4, 1, v1")
        c("v_mul_u32_u24 v4, 6144, v4")
        c("v_and_b32 v5, 1, v1")
        c("v_lshl_add_u32 v4, v5, 7, v4")
        c("s_lshr_b32 s20, s2, 3")
        c("s_mul_i32 s20, s20, 16*6144")
        c("s_and_b32 s21, s2, 7")
        c("s_lshl_b32 s21, s21, 8")
        c("s_add_u32 s20, s20, s21")
        c("s_mov_b64 exec, 0xffffffff")
        c(f"buffer_load_dword v30, v4, {sr(S_WM)}, s20 offen")
        c("s_mov_b64 exec, -1")
        c.label("P2_NOTOUCH")
    c(f"s_sub_u32 s23, s{S_WAVE}, 8")
    for ii in range(3):
        v = 10 + ii
        c(f"v_add_u32 v4, {64*ii}, v1")
        c("v_mul_u32_u24 v5, 2731, v4")
        c("v_lshrrev_b32 v5, 16, v5")
        c("v_mul_u32_u24 v6, 24, v5")
        c("v_sub_u32 v6, v4, v6")
        c("v_lshrrev_b32 v7, 3, v6")
        c("v_bfe_u32 v8, v6, 1, 2")
        c("v_bfe_u32 v9, v5, 1, 1")
        c("v_lshl_add_u32 v9, s23, 1, v9")
        c("v_xor_b32 v8, v8, v9")
        c("v_and_b32 v6, 1, v6")
        c(f"v_mul_u32_u24 v{v}, 3072, v5")
        c(f"v_lshl_add_u32 v{v}, v7, 10, v{v}")
        c(f"v_lshl_add_u32 v{v}, v8, 5, v{v}")
        c(f"v_lshl_add_u32 v{v}, v6, 4, v{v}")
    c("s_lshl_b32 s20, s25, 7")
    c("s_mul_i32 s21, s23, 8*3072")
    c("s_add_u32 s20, s20, s21")
    c("s_mul_i32 s22, s23, 3072")
    c(f"s_add_u32 s22, s22, {B_BASE}")
    c("s_mov_b32 s24, s22")
    def stage():
        for b in range(4):
            for ii in range(3):
                c(f"s_add_u32 m0, s24, {b*6144 + ii*1024}")
                if ii == 0: c(f"s_add_u32 s21, s20, {b*16*3072}")
                else: c("s_nop 0")
                c(f"buffer_load_dwordx4 v{10+ii}, {sr(S_WQKV)}, s21 offen lds")
        c(f"s_add_u32 s20, s20, {64*3072}")
        c(f"s_add_u32 s24, s24, {B_SLOT}")
    c("s_mov_b32 s27, 4")
    if ONE:
        for q in range(3): c(f"v_mov_b32 v{24+q}, v{10+q}")
        c("s_cmp_ge_u32 s2, 64")
        c("s_cbranch_scc1 P2_NOMOD")
        c(f"s_cmp_eq_u32 s{S_WAVE}, 8")
        c("s_cbranch_scc0 P2_NOMOD")
        c("s_and_b32 s16, s2, 7")
        c("s_lshl_b32 s16, s16, 3")
        c("s_lshr_b32 s17, s2, 3")
        c("s_add_u32 s16, s16, s17")
        c("s_lshl_b32 s17, s16, 5")
        c.vm = []
        silu_frags(c, SCR + 16384)
        colsum_addr(c, 6144, SCR)
        colsum_dma(c, S_WM, 17, 6144, SCR, 0, 16)
        c("s_barrier")
        c("s_barrier")
        c("v_mov_b32 v22, 0")
        c(f"v_lshlrev_b32 v23, {2+FSH}, v1")
        c(f"s_lshl_b32 s18, s16, {7+FSH}")
        c(f"s_add_u32 s18, s18, {WS_FLG}")
        c("s_mov_b64 exec, 0xffffffff")
        c(f"buffer_store_dword v22, v23, {sr(S_WS)}, s18 offen sc1", "z")
        c("s_mov_b64 exec, -1")
        silu_frags2(c, SCR + 16384)
        c.wait_vm("cw")
        stamp_mid(c, 11)
        colsum_mma(c, 0, 0)
        colsum_mma(c, 8, 8)
        mod_store(c, 16)
        srd(c, 4, S_KA, 256)
        c("s_waitcnt vmcnt(0)")
        c("v_mov_b32 v22, 1")
        c("v_mov_b32 v23, 0")
        stamp_mid(c, 10)
        c("s_mov_b64 exec, 1")
        if os.environ.get("F1MODE", "last") == "last":
            c("v_mov_b32 v21, 1")
            c("buffer_atomic_add v21, v23, s[4:7], 0 offen sc0 sc1")
            c("s_waitcnt vmcnt(0)")
            c("v_readfirstlane_b32 s18, v21")
            c("s_cmp_eq_u32 s18, 63")
            c("s_cbranch_scc0 P2_NOTLAST")
            c("buffer_store_dword v22, v23, s[4:7], 0 offen offset:128 sc1")
            c.label("P2_NOTLAST")
        else:
            c("s_lshl_b32 s18, s16, 2")
            c("buffer_store_dword v22, v23, s[4:7], s18 offen sc1")
        c("s_mov_b64 exec, -1")
        for q in range(3): c(f"v_mov_b32 v{10+q}, v{24+q}")
        c("s_waitcnt vmcnt(0)")
        c(f"v_mov_b32 v23, {SCR + 20484}")
        c("ds_write_b32 v23, v22")
        c("s_branch P2_LPRE")
        c.label("P2_NOMOD")
        c("s_barrier")
    c("s_barrier")
    if ONE:
        c("s_cmp_ge_u32 s2, 64")
        c("s_cbranch_scc1 P2_LPRE")
        c(f"v_mov_b32 v23, {SCR + 20484}")
        c("s_mov_b32 s95, 0x400000")
        c.label("P2_W9")
        c("ds_read_b32 v22, v23")
        c("s_waitcnt lgkmcnt(0)")
        c("v_cmp_eq_u32 vcc, 1, v22")
        c("s_sub_u32 s95, s95, 1")
        c("s_cmp_eq_u32 s95, 0")
        c("s_cbranch_scc1 P2_LPRE")
        c("s_cbranch_vccnz P2_LPRE")
        c("s_sleep 2")
        c("s_branch P2_W9")
    c.label("P2_LPRE")
    stage()
    c("s_sub_u32 s27, s27, 1")
    if ONE:
        c("s_cmp_eq_u32 s27, 1")
        c("s_cbranch_scc0 P2_LPRE2")
        c(f"s_cmp_eq_u32 s{S_WAVE}, 9")
        c("s_cbranch_scc0 P2_NOT2")
        c("s_cmp_lt_u32 s2, 64")
        c("s_cbranch_scc1 P2_NOT2")
        c("s_lshr_b32 s12, s2, 3")
        c("s_sub_u32 s12, s12, 8")
        c("s_mul_i32 s13, s12, 160")
        c("s_and_b32 s14, s2, 1")
        c("s_lshl_b32 s14, s14, 9")
        c(f"s_add_u32 s14, s14, {192*3072}")
        for i in range(3):
            c(f"v_min_u32 v4, {159 - 64*i}, v1")
            c(f"v_add_u32 v4, {64*i}, v4")
            c("v_add_u32 v4, s13, v4")
            c("v_mul_u32_u24 v5, 5462, v4")
            c("v_lshrrev_b32 v5, 16, v5")
            c("v_mul_u32_u24 v6, 12, v5")
            c("v_sub_u32 v6, v4, v6")
            c("v_mul_u32_u24 v5, 3072, v5")
            c("v_lshrrev_b32 v7, 2, v6")
            c("v_lshl_add_u32 v5, v7, 10, v5")
            c("v_and_b32 v7, 3, v6")
            c("v_lshl_add_u32 v5, v7, 7, v5")
            c(f"buffer_load_dword v{31+i}, v5, {sr(S_WQKV)}, s14 offen")
        c("s_cmp_ge_u32 s12, 8")
        c("s_cbranch_scc1 P2_NOCODE")
        c("s_getpc_b64 s[4:5]")
        c.label("P2_PC")
        c(f"s_sub_u32 s4, s4, P2_PC-{NAME}_kernel")
        c("s_subb_u32 s5, s5, 0")
        c("v_lshlrev_b32 v4, 7, v1")
        c("s_lshl_b32 s13, s12, 13")
        c("v_add_u32 v4, s13, v4")
        c(f"v_min_u32 v4, CODE_END-{NAME}_kernel-4, v4")
        c("global_load_dword v34, v4, s[4:5]")
        c.label("P2_NOCODE")
        c("s_cmp_eq_u32 s12, 9")
        c("s_cbranch_scc0 P2_NOT2")
        c("v_lshlrev_b32 v4, 19, v1")
        c(f"buffer_load_dword v35, v4, {sr(S_WS)}, 0 offen sc1")
        for S in (S_WO, S_WG, S_WU, S_WD, S_OUT):
            c(f"buffer_load_dword v35, v4, {sr(S)}, 0 offen")
        c.label("P2_NOT2")
        c("s_waitcnt vmcnt(0)")
        c("s_barrier")
        c.label("P2_LPRE2")
    c("s_cmp_lg_u32 s27, 0")
    c("s_cbranch_scc1 P2_LPRE")
    if not ONE:
        c("s_waitcnt vmcnt(36)")
        c("s_barrier")
    c("s_mov_b32 s24, s22")
    c("s_mov_b32 s27, 4")
    c.label("P2_LMAIN")
    c("s_waitcnt vmcnt(24)")
    c("s_barrier")
    stage()
    c("s_sub_u32 s27, s27, 1")
    c("s_cmp_lg_u32 s27, 0")
    c("s_cbranch_scc1 P2_LMAIN")
    for k in range(3):
        c(f"s_waitcnt vmcnt({24 - 12*k})")
        c("s_barrier")
    if FUSED:
        c("s_barrier")
        c(f"s_cmp_eq_u32 s{S_WAVE}, 8")
        c(f"s_cbranch_scc0 {END}")
        c("s_lshl_b32 s20, s25, 7")
        c("s_lshl_b32 s21, s26, 2")
        c("s_add_u32 s20, s20, s21")
        c(f"s_add_u32 s20, s20, {F2B}")
        signal(c, 20, 4, 0)
    else:
        c("s_endpgm")
    c.label(END)

QA, QB, NA, NB, SA, SB, PA, PB, OA, OB = 8, 12, 16, 32, 48, 64, 80, 88, 96, 112
KF = [128, 132]; VF = [136, 144]
LV = 65536; CMB = 131072; HLP = CMB + 4 * 18 * 256
NA_T = 6; NP_A = 4

def unit(a, S, P, mf, loads=None):
    a(mf[0])
    for p in range(8):
        a(f"v_exp_f32 v{S+2*p}, v{S+2*p}")
        a(f"v_exp_f32 v{S+2*p+1}, v{S+2*p+1}")
        if p == 2: a(mf[1])
        if p == 5: a(mf[2])
        if p >= 1:
            j = p - 1
            a(f"v_cvt_pk_bf16_f32 v{P+j}, v{S+2*j}, v{S+2*j+1}")
    a(f"v_cvt_pk_bf16_f32 v{P+7}, v{S+14}, v{S+15}")
    if loads:
        for l in loads: a(l)
def kv_loads(kb, vb, koff, voff, filler):
    return [f"ds_read_b128 {r4(KF[kb])}, v6 offset:{koff}", "s_mov_b64 exec, s[4:5]", filler,
            f"ds_read_b128 {r4(VF[vb])}, v7 offset:{voff}", f"ds_read_b128 {r4(VF[vb]+4)}, v7 offset:{voff+512}", "s_mov_b64 exec, -1"]
def smfma(S, kf, q, C):
    c = r16(C) if C is not None else "0"
    return f"v_mfma_f32_32x32x16_bf16 {r16(S)}, {r4(kf)}, {r4(q)}, {c}"
def pv(O, vf, p):
    return f"v_mfma_f32_32x32x16_bf16 {r16(O)}, {r4(vf)}, {r4(p)}, {r16(O)}"
def rowmax(a, S, dst):
    a(f"v_max3_f32 v{dst}, v{S}, v{S+1}, v{S+2}")
    for i in range(3, 15, 2): a(f"v_max3_f32 v{dst}, v{dst}, v{S+i}, v{S+i+1}")
    a(f"v_max_f32 v{dst}, v{dst}, v{S+15}")
def negfill(a):
    for N in (NA, NB):
        a(f"v_mov_b32 v{N+1}, v{N}")
    for N in (NA, NB):
        a(f"v_permlane32_swap_b32 v{N}, v{N+1}")
    for N in (NA, NB):
        a(f"v_max_f32 v{N}, v{N}, v{N+1}")
    for N in (NA, NB):
        a(f"v_xor_b32 v{N}, 0x80000000, v{N}")
    for i in range(1, 16):
        a(f"v_mov_b32 v{NA+i}, v{NA}")
        a(f"v_mov_b32 v{NB+i}, v{NB}")

def p3(a):
    global SLEEP
    END = "P3_END"
    a("s_and_b32 s25, s2, 7")
    a("s_lshl_b32 s25, s25, 2")
    a("s_bfe_u32 s26, s2, 0x20003")
    a("s_add_u32 s25, s25, s26")
    a("s_lshr_b32 s26, s2, 5")
    a("s_lshl_b32 s27, s25, 16")
    a("v_lshlrev_b32 v4, 4, v1")
    a(f"s_cmp_ge_u32 s{S_WAVE}, 8")
    a("s_cbranch_scc1 P3_LOADER")
    a("v_lshrrev_b32 v3, 5, v1")
    a("v_and_b32 v5, 15, v1")
    a("v_lshlrev_b32 v5, 4, v5")
    a("v_lshl_add_u32 v5, v3, 8, v5")
    a("s_mov_b32 s4, 0x0000ffff")
    a("s_mov_b32 s5, 0x0000ffff")
    a(f"s_and_b32 s8, s{S_WAVE}, 3")
    a(f"s_lshr_b32 s9, s{S_WAVE}, 2")
    a("s_lshl_b32 s10, s26, 18")
    a("s_lshl_b32 s11, s8, 16")
    a("s_add_u32 s10, s10, s11")
    a("s_lshl_b32 s11, s25, 10")
    a("s_add_u32 s10, s10, s11")
    a(f"s_add_u32 s10, s10, {WS_O}")
    a("s_add_u32 s11, s10, 32768")
    a("s_lshl_b32 s12, s9, 15")
    a("v_add_u32 v6, s12, v4")
    a("v_add_u32 v7, s12, v5")
    a(f"v_add_u32 v7, {LV}, v7")
    a("s_lshl_b32 s12, s8, 11")
    a(f"s_add_u32 s12, s12, {CMB}")
    a("v_add_u32 v2, s12, v4")
    a(f"s_mov_b32 s6, {NP_A // 2}")
    a("s_mov_b32 s7, 0")
    a("v_and_b32 v3, 27, v1")
    a("v_cmp_eq_u32 vcc, 16, v3")
    a("v_mov_b32 v3, 0x3f803f80")
    a(f"v_cndmask_b32 v{VF[0]}, 0, v3, vcc")
    for r in range(VF[0] + 1, VF[0] + 16): a(f"v_mov_b32 v{r}, v{VF[0]}")
    for r in range(OA, OA + 32): a(f"v_mov_b32 v{r}, 0")
    for r in range(PB, PB + 8): a(f"v_mov_b32 v{r}, 0")
    a("s_barrier")
    a(f"ds_read_b128 {r4(QA)}, v2")
    a(f"ds_read_b128 {r4(QB)}, v2 offset:1024")
    a(f"ds_read_b128 {r4(PA)}, v4")
    a.label("P3_RESTART")
    a(f"ds_read_b128 {r4(KF[0])}, v6")
    a(f"ds_read_b128 {r4(KF[1])}, v6 offset:1024")
    a("s_mov_b64 exec, s[4:5]")
    a(f"ds_read_b128 {r4(VF[0])}, v7")
    a(f"ds_read_b128 {r4(VF[0]+4)}, v7 offset:512")
    a("s_mov_b64 exec, -1")
    a("s_waitcnt lgkmcnt(0)")
    a("s_cmp_eq_u32 s7, 0")
    a("s_cbranch_scc0 P3_HAVEM")
    a(smfma(SA, PA, QA, None))
    a(smfma(SB, PA, QB, None))
    rowmax(a, SA, NA)
    rowmax(a, SB, NB)
    negfill(a)
    a.label("P3_HAVEM")
    stamp_mid(a, 0 if not FUSED else 2)
    a("s_nop 1")
    a(smfma(SA, KF[0], QA, NA))
    a("s_nop 7")
    a("s_nop 3")
    b = Asm()
    b.lines.append(".p2align 6")
    b.label("P3_LOOP")
    for par in range(2):
        kc, kn = KF[par], KF[1 - par]
        vc, vp = VF[par], VF[1 - par]
        unit(b, SA, PA, [smfma(SB, kc, QB, NB), pv(OB, vp, PB), pv(OB, vp + 4, PB + 4)],
             kv_loads(par, 1 - par, (par + 2) * 1024, (par + 1) * 1024, ["s_sub_u32 s6, s6, 1", "s_nop 0"][par]))
        b("s_waitcnt lgkmcnt(3)")
        unit(b, SB, PB, [smfma(SA, kn, QA, NA), pv(OA, vc, PA), pv(OA, vc + 4, PA + 4)])
    b("v_add_u32 v6, 0x800, v6")
    b("v_add_u32 v7, 0x800, v7")
    b("s_cmp_lg_u32 s6, 0")
    b("s_cbranch_scc1 P3_LOOP")
    loop = b.loop(b.lines)
    assert len(loop) == len(b.lines)
    a.lines += loop
    c = a
    c("s_cmp_eq_u32 s7, 0")
    c("s_cbranch_scc0 P3_DONE")
    c("s_barrier")
    c("s_mov_b32 s7, 1")
    c(f"s_mov_b32 s6, {(32 - NP_A) // 2}")
    c("s_branch P3_LOOP")
    c.label("P3_DONE")
    c("s_nop 1")
    c(pv(OB, VF[1], PB))
    c(pv(OB, VF[1] + 4, PB + 4))
    c("s_waitcnt lgkmcnt(0)")
    stamp_mid(c, 1 if not FUSED else 3)
    c("s_cmp_eq_u32 s7, 1")
    c("s_cbranch_scc0 P3_FINAL")
    c("v_lshlrev_b32 v2, 2, v1")
    c("s_mul_i32 s12, s8, 4608")
    c(f"s_add_u32 s12, s12, {CMB}")
    c("v_add_u32 v2, s12, v2")
    c("s_cmp_eq_u32 s9, 0")
    c("s_cbranch_scc1 P3_WAITP")
    c("s_nop 7")
    c("s_nop 3")
    for i in range(9):
        c(f"ds_write_b32 v2, v{OA+i} offset:{i*256}")
        c(f"ds_write_b32 v2, v{OB+i} offset:{(9+i)*256}")
    c("s_waitcnt lgkmcnt(0)")
    c("s_barrier")
    if FUSED: c("s_barrier")
    finish(c, 2, END, 48)
    c.label("P3_WAITP")
    c("s_barrier")
    for i in range(9): c(f"ds_read_b32 v{SA+i}, v2 offset:{i*256}")
    for i in range(9): c(f"ds_read_b32 v{SB+i}, v2 offset:{(9+i)*256}")
    c("s_waitcnt lgkmcnt(9)")
    for i in range(9): c(f"v_add_f32 v{OA+i}, v{OA+i}, v{SA+i}")
    c("s_waitcnt lgkmcnt(0)")
    for i in range(9): c(f"v_add_f32 v{OB+i}, v{OB+i}, v{SB+i}")
    c(f"v_mov_b32 v{SA}, 0")
    for O in (OA, OB):
        for i in range(0, 8, 2): c(f"v_max3_f32 v{SA}, v{SA}, abs(v{O+i}), abs(v{O+i+1})")
    c(f"v_add_f32 v{SA+1}, v{OA}, v{OA+1}")
    c(f"v_add_f32 v{SA+2}, v{OB}, v{OB+1}")
    for i in range(2, 8):
        c(f"v_add_f32 v{SA+1}, v{SA+1}, v{OA+i}")
        c(f"v_add_f32 v{SA+2}, v{SA+2}, v{OB+i}")
    c("s_mov_b32 s12, 0x71800000")
    c("s_mov_b32 s13, 0x21800000")
    c(f"v_cmp_gt_f32 vcc, s12, v{OA+8}")
    c(f"v_cmp_gt_f32 s[14:15], s12, v{OB+8}")
    c(f"v_cmp_lt_f32 s[16:17], s13, v{OA+8}")
    c(f"v_cmp_lt_f32 s[18:19], s13, v{OB+8}")
    c("s_mov_b32 s13, 0x7f000000")
    c(f"v_cmp_gt_f32 s[20:21], s13, v{SA}")
    c(f"v_cmp_o_f32 s[22:23], v{SA+1}, v{SA+2}")
    c("s_and_b64 vcc, vcc, s[14:15]")
    c("s_and_b64 s[16:17], s[16:17], s[18:19]")
    c("s_and_b64 s[20:21], s[20:21], s[22:23]")
    c("s_and_b64 vcc, vcc, s[16:17]")
    c("s_and_b64 vcc, vcc, s[20:21]")
    c("s_cmp_eq_u64 vcc, -1")
    c("s_cbranch_scc0 P3_FALLBACK")
    c.label("P3_FINAL")
    c("s_nop 7")
    c("s_nop 3")
    for (O, P, so) in ((OA, PA, 10), (OB, PB, 11)):
        c(f"v_rcp_f32 v{O+8}, v{O+8}")
        for i in range(8): c(f"v_mul_f32 v{O+i}, v{O+i}, v{O+8}")
        for j in range(4): c(f"v_cvt_pk_bf16_f32 v{P+j}, v{O+2*j}, v{O+2*j+1}")
        c(f"buffer_store_dwordx4 {r4(P)}, v4, {sr(S_WS)}, s{so} offen {SC}")
    if FUSED:
        c("s_waitcnt vmcnt(0)")
        c("s_barrier")
    finish(c, 2, END, 48)
    c.label("P3_FALLBACK")
    c("s_mov_b32 s7, 2")
    c("s_mov_b32 s6, 64")
    c("v_mov_b32 v6, v4")
    c(f"v_mov_b32 v{NA}, 0xff800000")
    c(f"v_mov_b32 v{NB}, 0xff800000")
    c.label("P3_FBLOOP")
    c(f"ds_read_b128 {r4(KF[0])}, v6")
    c("s_waitcnt lgkmcnt(0)")
    c(smfma(SA, KF[0], QA, None))
    c(smfma(SB, KF[0], QB, None))
    for (S, N) in ((SA, NA), (SB, NB)):
        for i in range(0, 16, 2): c(f"v_max3_f32 v{N}, v{N}, v{S+i}, v{S+i+1}")
    c("v_add_u32 v6, 0x400, v6")
    c("s_sub_u32 s6, s6, 1")
    c("s_cmp_lg_u32 s6, 0")
    c("s_cbranch_scc1 P3_FBLOOP")
    negfill(c)
    for r in range(OA, OA + 32): c(f"v_mov_b32 v{r}, 0")
    for r in range(PB, PB + 8): c(f"v_mov_b32 v{r}, 0")
    c("v_mov_b32 v6, v4")
    c(f"v_add_u32 v7, {LV}, v5")
    c("s_mov_b32 s6, 32")
    c("s_branch P3_RESTART")
    c.label("P3_LOADER")
    c("s_setprio 3")
    c(f"s_sub_u32 s23, s{S_WAVE}, 8")
    c("s_lshr_b32 s20, s25, 2")
    c("s_lshl_b32 s20, s20, 7")
    c(f"s_add_u32 s19, s20, {F2B}")
    c("s_lshl_b32 s18, s26, 2")
    c("s_lshl_b32 s18, 15, s18")
    c("s_or_b32 s18, s18, 0x00070007")
    poll(c, 19, 32, 8, 1, need=18)
    c(f"s_mul_i32 s20, s23, {WS_V - WS_K}")
    c("s_add_u32 s20, s20, s27")
    c(f"s_add_u32 s20, s20, {WS_K}")
    c("s_lshl_b32 s21, s23, 16")
    c("s_lshl_b32 s22, s26, 13")
    c("s_add_u32 s22, s22, s27")
    c("s_lshl_b32 s24, s23, 12")
    c("s_add_u32 s22, s22, s24")
    c(f"s_add_u32 s22, s22, {WS_Q}")
    c(f"s_add_u32 s24, s24, {CMB}")
    c(f"s_mov_b32 s6, {NA_T}")
    c("s_mov_b32 s7, 0")
    c.label("P3_LKV")
    for hf in range(2):
        c(f"s_add_u32 m0, s21, {hf*32768}")
        c(f"s_add_u32 s8, s20, {hf*32768}")
        c(f"buffer_load_dwordx4 v4, {sr(S_WS)}, s8 offen {SCL} lds")
    c("s_add_u32 s20, s20, 1024")
    c("s_add_u32 s21, s21, 1024")
    c("s_sub_u32 s6, s6, 1")
    c("s_cmp_lg_u32 s6, 0")
    c("s_cbranch_scc1 P3_LKV")
    c("s_cmp_eq_u32 s7, 0")
    c("s_cbranch_scc0 P3_LKV2")
    for i in range(4):
        c(f"s_add_u32 m0, s24, {i*1024}")
        c(f"s_add_u32 s8, s22, {i*1024}")
        c(f"buffer_load_dwordx4 v4, {sr(S_WS)}, s8 offen {SCL} lds")
    c("s_waitcnt vmcnt(0)")
    if FUSED: stamp_mid(c, 2)
    c("s_barrier")
    poll(c, 19, 32, 8, setup=False)
    c("s_mov_b32 s7, 1")
    c(f"s_mov_b32 s6, {32 - NA_T}")
    c("s_branch P3_LKV")
    c.label("P3_LKV2")
    c("s_waitcnt vmcnt(0)")
    c("s_barrier")
    c(f"s_cmp_eq_u32 s{S_WAVE}, 8")
    c("s_cbranch_scc0 P3_HPREF")
    if ONE:
        c("s_cmp_ge_u32 s2, 128")
        c("s_cbranch_scc1 P3_NOMOD")
        c("s_and_b32 s16, s2, 7")
        c("s_lshl_b32 s16, s16, 4")
        c("s_lshr_b32 s17, s2, 3")
        c("s_add_u32 s16, s16, s17")
        c("s_add_u32 s16, s16, 64")
        c("s_lshl_b32 s17, s16, 5")
        c.vm = []
        silu_frags(c, HLP)
        silu_frags2(c, HLP)
        c("s_waitcnt lgkmcnt(0)")
        colsum_addr(c, 6144, HLP)
        for half in range(2):
            colsum_dma(c, S_WM, 17, 6144, HLP, half * 8, 8)
            c("s_waitcnt vmcnt(0)")
            colsum_mma(c, half * 8, 0)
        mod_store(c, 16)
        c("s_waitcnt vmcnt(0)")
        c("s_lshl_b32 s10, s16, 2")
        c(f"s_add_u32 s10, s10, {F1B - 256}")
        signal(c, 10, 4)
        c.label("P3_NOMOD")
    c("s_cmp_ge_u32 s2, 224")
    c("s_cbranch_scc1 P3_LEND")
    if ONE:
        c(f"s_mov_b32 s10, {F1B + 128}")
        keep = SLEEP; SLEEP = 12
        poll(c, 10, 64, 8)
        SLEEP = keep
    c("s_bfe_u32 s8, s2, 0x20001")
    c("s_mul_i32 s8, s8, 28")
    c("s_lshr_b32 s9, s2, 3")
    c("s_add_u32 s8, s8, s9")
    c("s_and_b32 s12, s2, 1")
    c("s_mul_i32 s12, s12, 56")
    c("s_cmp_ge_u32 s8, 56")
    for q in range(4): c(f"s_cselect_b32 s{4+q}, s{S_WU+q}, s{S_WG+q}")
    c("s_cselect_b32 s13, 56, 0")
    c("s_cselect_b32 s9, 14336, 0")
    c("s_cselect_b32 s14, 112, 0")
    c("s_mov_b32 s7, 0x00020000")
    c("s_sub_u32 s8, s8, s13")
    c("s_add_u32 s8, s8, s12")
    c("s_add_u32 s14, s14, s8")
    c("s_lshl_b32 s10, s8, 5")
    c("v_and_b32 v10, 15, v1")
    c("v_lshrrev_b32 v11, 4, v1")
    c("v_lshlrev_b32 v12, 10, v10")
    c("v_lshl_add_u32 v12, v11, 4, v12")
    c(f"v_add_u32 v12, {WS_AB}, v12")
    c("v_cmp_gt_u32 vcc, 2, v10")
    c("v_mov_b32 v13, 0x7ff00000")
    c("v_cndmask_b32 v12, v13, v12, vcc")
    for i in range(16):
        c(f"buffer_load_dwordx4 {r4(32+4*i)}, v12, {sr(S_WS)}, 0 offen offset:{64*i} {SC}")
    colsum_addr(c, 3584, HLP)
    for half in range(2):
        colsum_dma(c, 4, 10, 3584, HLP, half * 8, 8)
        c("s_waitcnt vmcnt(0)")
        colsum_mma(c, half * 8, 0)
    c("v_cvt_pk_bf16_f32 v6, v16, v17")
    c("v_lshlrev_b32 v10, 16, v6")
    c("v_and_b32 v11, 0xffff0000, v6")
    c("v_sub_f32 v12, v16, v10")
    c("v_sub_f32 v13, v17, v11")
    c("v_cvt_pk_bf16_f32 v14, v10, v12")
    c("v_cvt_pk_bf16_f32 v15, v11, v13")
    c("v_lshlrev_b32 v10, 3, v1")
    c("s_lshl_b32 s10, s8, 7")
    c("s_add_u32 s10, s10, s9")
    c(f"s_add_u32 s10, s10, {WS_EXT}")
    c("s_mov_b64 exec, 0xffff")
    c(f"buffer_store_dwordx2 v[14:15], v10, {sr(S_WS)}, s10 offen {SC}")
    c("s_mov_b64 exec, -1")
    if FUSED:
        c("s_waitcnt vmcnt(0)")
        c("s_lshl_b32 s10, s14, 2")
        c(f"s_add_u32 s10, s10, {FEB}")
        signal(c, 10, 4)
    c("s_branch P3_LEND")
    c.label("P3_HPREF")
    c("v_lshlrev_b32 v8, 7, v1")
    c("s_lshr_b32 s4, s2, 3")
    if ONE:
        c("v_lshrrev_b32 v9, 2, v1")
        c("v_mul_u32_u24 v9, 6144, v9")
        c("v_and_b32 v10, 3, v1")
        c("v_lshl_add_u32 v9, v10, 7, v9")
        c("s_mul_i32 s5, s4, 16*6144")
        c("s_and_b32 s6, s2, 7")
        c("s_lshl_b32 s6, s6, 9")
        c("s_add_u32 s5, s5, s6")
        c("s_add_u32 s5, s5, 2048")
        c(f"buffer_load_dword v30, v9, {sr(S_WM)}, s5 offen")
    c("s_lshl_b32 s5, s4, 14")
    c(f"buffer_load_dword v16, v8, {sr(S_WO)}, s5 offen")
    c("s_add_u32 s5, s5, 8192")
    c(f"buffer_load_dword v17, v8, {sr(S_WO)}, s5 offen")
    c("s_and_b32 s6, s2, 1")
    c("s_mul_i32 s6, s6, 1792")
    c("s_mul_i32 s7, s4, 16*3584")
    c("s_add_u32 s6, s6, s7")
    for i in range(4):
        c(f"v_add_u32 v9, {64*i}, v1")
        c("v_mul_u32_u24 v10, 4682, v9")
        c("v_lshrrev_b32 v10, 16, v10")
        c("v_mul_u32_u24 v11, 14, v10")
        c("v_sub_u32 v11, v9, v11")
        c("v_mul_u32_u24 v10, 3584, v10")
        c("v_lshl_add_u32 v10, v11, 7, v10")
        if i == 3:
            c("v_cmp_gt_u32 vcc, 224, v9")
            c("v_mov_b32 v13, 0x7ff00000")
            c("v_cndmask_b32 v10, v13, v10, vcc")
        c(f"buffer_load_dword v{18+2*i}, v10, {sr(S_WG)}, s6 offen")
        c(f"buffer_load_dword v{19+2*i}, v10, {sr(S_WU)}, s6 offen")
    c("s_mul_i32 s5, s2, 7168")
    c("s_mov_b32 s6, 0xffffffff")
    c("s_mov_b32 s7, 0x00ffffff")
    c("s_mov_b64 exec, s[6:7]")
    c(f"buffer_load_dword v26, v8, {sr(S_WD)}, s5 offen")
    c("s_mov_b64 exec, -1")
    if FUSED:
        keep = SLEEP; SLEEP = 8
        if ONE:
            for q in range(2):
                c(f"s_mov_b32 s4, {F1B + 256*q}")
                poll(c, 4, 64, 14)
        c("s_cmp_ge_u32 s2, 224")
        c("s_cbranch_scc1 P3_LEND")
        c("s_lshr_b32 s4, s2, 3")
        c("s_mul_i32 s5, s4, 37")
        c("s_lshr_b32 s5, s5, 8")
        c("s_mul_i32 s5, s5, 7")
        c("s_sub_u32 s4, s4, s5")
        c("s_and_b32 s5, s2, 1")
        c("s_mul_i32 s5, s5, 7")
        c("s_add_u32 s4, s4, s5")
        c(f"s_lshl_b32 s4, s4, {5+FSH}")
        c(f"s_add_u32 s4, s4, {WS_FLG + (FEB << FSH)}")
        c("v_and_b32 v14, 7, v1")
        c("v_bfe_u32 v15, v1, 3, 1")
        c("v_mul_u32_u24 v15, 112, v15")
        c("v_add_u32 v14, v14, v15")
        c(f"v_lshlrev_b32 v14, {2+FSH}, v14")
        poll(c, 4, 16, 14, setup=False)
        SLEEP = keep
    c.label("P3_LEND")
    if FUSED:
        c("s_waitcnt vmcnt(0)")
        c("s_barrier")
        stamp_mid(c, 3)
        c("s_barrier")
        c(f"s_cmp_eq_u32 s{S_WAVE}, 8")
        c(f"s_cbranch_scc0 {END}")
        c("s_lshl_b32 s20, s26, 7")
        c("s_lshl_b32 s21, s25, 2")
        c("s_add_u32 s20, s20, s21")
        c(f"s_add_u32 s20, s20, {F3B}")
        signal(c, 20, 4, 4)
    else:
        c("s_endpgm")
    c.label(END)

def tile64_ids(a):
    a("s_bfe_u32 s25, s2, 0x30003")
    a("s_and_b32 s26, s2, 7")
    a("s_lshl_b32 s26, s26, 2")
    a("s_lshr_b32 s27, s2, 6")
    a("s_add_u32 s26, s26, s27")

def tile64_addrs(a, vA, vB, t0):
    a(f"v_lshlrev_b32 v{vA}, 4, v1")
    a("s_lshl_b32 s20, s23, 12")
    a(f"v_add_u32 v{vA}, s20, v{vA}")
    a(f"v_lshrrev_b32 v{t0+1}, 5, v1")
    a(f"v_bfe_u32 v{t0}, v1, 2, 2")
    a(f"v_lshl_add_u32 v{t0+2}, v{t0+1}, 2, v{t0}")
    a(f"v_lshlrev_b32 v{vB}, 7, v{t0+2}")
    a(f"v_lshrrev_b32 v{t0}, 1, v{t0}")
    a(f"v_xor_b32 v{t0}, s24, v{t0}")
    a(f"v_lshl_add_u32 v{vB}, v{t0}, 6, v{vB}")
    a(f"v_bfe_u32 v{t0}, v1, 4, 1")
    a(f"v_lshl_add_u32 v{vB}, v{t0}, 5, v{vB}")
    a(f"v_and_b32 v{t0}, 3, v1")
    a(f"v_lshl_add_u32 v{vB}, v{t0}, 3, v{vB}")
    a(f"v_add_u32 v{vB}, 8192, v{vB}")
    a(f"v_add_u32 v{vA+1}, 65536, v{vA}")
    a(f"v_add_u32 v{vB+1}, 65536, v{vB}")

def bload64_addr(c, v):
    c("v_lshrrev_b32 v3, 3, v1")
    c("v_bfe_u32 v8, v1, 2, 1")
    c("v_bfe_u32 v9, v1, 4, 1")
    c("v_xor_b32 v8, v8, v9")
    c(f"v_lshlrev_b32 v{v}, 10, v3")
    c(f"v_lshl_add_u32 v{v}, v8, 6, v{v}")
    c("v_and_b32 v8, 3, v1")
    c(f"v_lshl_add_u32 v{v}, v8, 4, v{v}")

def p4(a):
    STG = 16384; XT = 8 * STG; TB = XT + 8192
    END = "P4_END"
    tile64_ids(a)
    a(f"s_cmp_ge_u32 s{S_WAVE}, 8")
    a("s_cbranch_scc1 P4_LOADER")
    a(f"s_cmp_ge_u32 s{S_WAVE}, 4")
    a("s_cbranch_scc1 P4_IDLE")
    a(f"s_and_b32 s23, s{S_WAVE}, 1")
    a(f"s_lshr_b32 s24, s{S_WAVE}, 1")
    a("v_and_b32 v3, 31, v1")
    a("v_lshrrev_b32 v4, 5, v1")
    a("s_lshl_b32 s4, s26, 16")
    a("s_lshl_b32 s5, s23, 15")
    a("s_add_u32 s4, s4, s5")
    a("s_lshl_b32 s5, s25, 12")
    a("s_add_u32 s4, s4, s5")
    a("s_lshl_b32 s5, s24, 11")
    a("s_add_u32 s4, s4, s5")
    a(f"s_add_u32 s5, s4, {WS_X1S}")
    a(f"s_add_u32 s4, s4, {WS_X1}")
    a("s_lshl_b32 s6, s26, 9")
    a("s_lshl_b32 s7, s23, 8")
    a("s_add_u32 s6, s6, s7")
    a("s_lshl_b32 s7, s25, 15")
    a("s_add_u32 s6, s6, s7")
    a("s_lshl_b32 s7, s24, 14")
    a("s_add_u32 s6, s6, s7")
    a(f"s_add_u32 s6, s6, {WS_ST2}")
    tile64_addrs(a, 16, 20, 24)
    a("v_bfe_u32 v5, v1, 1, 3")
    a("s_lshl_b32 s7, s24, 2")
    a("v_xor_b32 v5, s7, v5")
    a("v_lshlrev_b32 v8, 7, v3")
    a("v_lshl_add_u32 v8, v5, 4, v8")
    a("v_lshl_add_u32 v8, v4, 3, v8")
    a("s_lshl_b32 s7, s23, 12")
    a(f"s_add_u32 s7, s7, {XT}")
    a("v_add_u32 v8, s7, v8")
    for g in range(1, 4): a(f"v_xor_b32 v{8+g}, {16*g}, v8")
    a("v_lshlrev_b32 v12, 4, v4")
    a("s_lshl_b32 s7, s24, 7")
    a(f"s_add_u32 s7, s7, {TB}")
    a("v_add_u32 v12, s7, v12")
    a("v_lshlrev_b32 v5, 4, v1")
    a("v_lshlrev_b32 v6, 3, v3")
    a("v_lshl_add_u32 v6, v4, 2, v6")
    ACC = 32
    for r in range(ACC, ACC + 16): a(f"v_mov_b32 v{r}, 0")
    FR = [48, 56]
    def reads(s):
        c, ks = divmod(s, 4)
        F = FR[s & 1]
        hi = int(c >= 4)
        off = (c % 4) * STG
        a(f"ds_read_b128 {r4(F)}, v{16+hi} offset:{off + ks*1024}")
        a(f"ds_read_b64_tr_b16 v[{F+4}:{F+5}], v{20+hi} offset:{off + ks*2048}")
        a(f"ds_read_b64_tr_b16 v[{F+6}:{F+7}], v{20+hi} offset:{off + ks*2048 + 1024}")
    a("s_barrier")
    stamp_mid(a, 0 if not FUSED else 4)
    reads(0)
    for s in range(32):
        if s + 1 < 32:
            if (s + 1) % 8 == 0: a("s_barrier")
            reads(s + 1)
            a("s_waitcnt lgkmcnt(3)")
        else:
            for g in range(4): a(f"ds_read_b64 v[{64+2*g}:{65+2*g}], v{8+g}")
            for g in range(4): a(f"ds_read_b128 {r4(72+4*g)}, v12 offset:{g*32}")
            for g in range(4): a(f"ds_read_b128 {r4(104+4*g)}, v12 offset:{256+g*32}")
            a("s_waitcnt lgkmcnt(12)")
        F = FR[s & 1]
        a(f"v_mfma_f32_32x32x16_bf16 {r16(ACC)}, {r4(F+4)}, {r4(F)}, {r16(ACC)}")
    stamp_mid(a, 1 if not FUSED else 5)
    a("s_waitcnt lgkmcnt(8)")
    for g in range(4):
        for d in range(2):
            a(f"v_lshlrev_b32 v{88+4*g+2*d}, 16, v{64+2*g+d}")
            a(f"v_and_b32 v{89+4*g+2*d}, 0xffff0000, v{64+2*g+d}")
    a("s_waitcnt lgkmcnt(0)")
    for r in range(16): a(f"v_fma_f32 v{88+r}, v{72+r}, v{ACC+r}, v{88+r}")
    for j in range(8): a(f"v_cvt_pk_bf16_f32 v{48+j}, v{88+2*j}, v{89+2*j}")
    for j in range(8):
        a(f"v_lshlrev_b32 v{88+2*j}, 16, v{48+j}")
        a(f"v_and_b32 v{89+2*j}, 0xffff0000, v{48+j}")
    for r in range(16): a(f"v_mul_f32 v{104+r}, v{104+r}, v{88+r}")
    for j in range(8): a(f"v_cvt_pk_bf16_f32 v{72+j}, v{104+2*j}, v{105+2*j}")
    a(f"buffer_store_dwordx4 v[72:75], v5, {sr(S_WS)}, s5 offen {SC}")
    a(f"buffer_store_dwordx4 v[76:79], v5, {sr(S_WS)}, s5 offen offset:1024 {SC}")
    a("v_add_f32 v56, v88, v89")
    a("v_mul_f32 v57, v88, v88")
    a("v_add_f32 v58, v90, v91")
    a("v_mul_f32 v59, v89, v89")
    a("v_fmac_f32 v57, v90, v90")
    a("v_fmac_f32 v59, v91, v91")
    for r in range(4, 16, 2):
        a(f"v_add_f32 v56, v56, v{88+r}")
        a(f"v_fmac_f32 v57, v{88+r}, v{88+r}")
        a(f"v_add_f32 v58, v58, v{89+r}")
        a(f"v_fmac_f32 v59, v{89+r}, v{89+r}")
    a("v_add_f32 v56, v56, v58")
    a("v_add_f32 v57, v57, v59")
    a("v_permlane32_swap_b32 v56, v57")
    a("v_add_f32 v56, v56, v57")
    a(f"buffer_store_dword v56, v6, {sr(S_WS)}, s6 offen {SC}")
    a(f"buffer_store_dwordx4 v[48:51], v5, {sr(S_WS)}, s4 offen {SC}")
    a(f"buffer_store_dwordx4 v[52:55], v5, {sr(S_WS)}, s4 offen offset:1024 {SC}")
    if FUSED:
        a("s_waitcnt vmcnt(0)")
        a("s_barrier")
    finish(a, 3, END, 88)
    c = a
    c.label("P4_IDLE")
    if FUSED:
        barriers(c, 5)
        c(f"s_branch {END}")
    else:
        c("s_endpgm")
    c.label("P4_LOADER")
    c("s_setprio 3")
    c(f"s_cmp_eq_u32 s{S_WAVE}, 8")
    c("s_cbranch_scc0 P4_LB")
    c("v_lshrrev_b32 v3, 3, v1")
    c("v_and_b32 v4, 7, v1")
    c("v_lshrrev_b32 v5, 4, v1")
    c("v_xor_b32 v6, v4, v5")
    c("v_lshlrev_b32 v10, 10, v3")
    c("v_lshl_add_u32 v10, v6, 4, v10")
    c("v_xor_b32 v11, 64, v10")
    c("v_lshlrev_b32 v12, 4, v1")
    c("s_lshl_b32 s4, s26, 16")
    c("s_lshl_b32 s5, s25, 7")
    c("s_add_u32 s5, s5, s4")
    def xtile():
        for i in range(8):
            c(f"s_mov_b32 m0, {XT + i*1024}")
            c(f"s_add_u32 s6, s5, {i*8192}")
            c(f"buffer_load_dwordx4 v{10 + (i & 1)}, {sr(S_X)}, s6 offen lds")
    if FUSED: xtile()
    c("s_lshr_b32 s6, s26, 2")
    c("s_lshl_b32 s6, s6, 7")
    c(f"s_add_u32 s6, s6, {F3B}")
    poll(c, 6, 32, 14, 5)
    c(f"s_add_u32 s4, s4, {WS_O}")
    c("s_mov_b32 s7, 0")
    c("s_mov_b32 s8, 8")
    c.label("P4_LA")
    for i in range(8):
        tt, k = i >> 2, i & 3
        c(f"s_add_u32 m0, s7, {i*1024}")
        c(f"s_add_u32 s6, s4, {tt*32768 + k*1024}")
        c(f"buffer_load_dwordx4 v12, {sr(S_WS)}, s6 offen {SCL} lds")
    c("s_add_u32 s4, s4, 4096")
    c(f"s_add_u32 s7, s7, {STG}")
    c("s_sub_u32 s8, s8, 1")
    c("s_and_b32 s9, s8, 5")
    c("s_cmp_eq_u32 s9, 1")
    c("s_cbranch_scc0 P4_LANB")
    c("s_waitcnt vmcnt(24)")
    c("s_barrier")
    c.label("P4_LANB")
    c("s_cmp_lg_u32 s8, 0")
    c("s_cbranch_scc1 P4_LA")
    if not FUSED: xtile()
    c(f"s_waitcnt vmcnt({16 if FUSED else 24})")
    c("s_barrier")
    c("s_waitcnt vmcnt(0)")
    c("s_barrier")
    if FUSED:
        c("s_barrier")
        c("s_lshr_b32 s4, s26, 1")
        c("s_lshl_b32 s4, s4, 7")
        c("s_and_b32 s5, s26, 1")
        c("s_lshl_b32 s5, s5, 3")
        c("s_add_u32 s5, s5, s25")
        c("s_lshl_b32 s5, s5, 2")
        c("s_add_u32 s4, s4, s5")
        c(f"s_add_u32 s4, s4, {F4B}")
        signal(c, 4, 4, 6)
        c(f"s_branch {END}")
    else:
        c("s_endpgm")
    c.label("P4_LB")
    bload64_addr(c, 10)
    c("s_lshl_b32 s4, s25, 7")
    c("s_mov_b32 s7, 8192")
    c("s_mov_b32 s8, 8")
    c.label("P4_LBL")
    for i in range(8):
        c(f"s_add_u32 m0, s7, {i*1024}")
        c(f"s_add_u32 s6, s4, {i*8192}")
        c(f"buffer_load_dwordx4 v10, {sr(S_WO)}, s6 offen lds")
    c("s_add_u32 s4, s4, 65536")
    c(f"s_add_u32 s7, s7, {STG}")
    c("s_sub_u32 s8, s8, 1")
    if not FUSED:
        c("s_and_b32 s9, s8, 5")
        c("s_cmp_eq_u32 s9, 1")
        c("s_cbranch_scc0 P4_LBNB")
        c("s_waitcnt vmcnt(24)")
        c("s_barrier")
        c.label("P4_LBNB")
    else:
        c("s_waitcnt vmcnt(48)")
    c("s_cmp_lg_u32 s8, 0")
    c("s_cbranch_scc1 P4_LBL")
    c("v_lshlrev_b32 v10, 2, v1")
    c("s_lshl_b32 s4, s25, 8")
    c(f"s_add_u32 s4, s4, {WS_MOD + 4096}")
    c(f"s_mov_b32 m0, {TB}")
    c("s_add_u32 s5, s4, 4096")
    c(f"buffer_load_dword v10, {sr(S_WS)}, s4 offen {SCL} lds")
    c(f"s_mov_b32 m0, {TB + 256}")
    c("s_nop 0")
    c(f"buffer_load_dword v10, {sr(S_WS)}, s5 offen {SCL} lds")
    if FUSED:
        c("s_waitcnt vmcnt(0)")
        barriers(c, 5)
    else:
        c("s_waitcnt vmcnt(18)")
        c("s_barrier")
        c("s_waitcnt vmcnt(0)")
        c("s_barrier")
        c("s_endpgm")
    c.label(END)

def p5(a):
    A_SZ = 16384; STG = 49152; NS = 3
    TST = NS * STG
    TEX = TST + 2048
    ACC = 32; FR = [96, 128]
    END = "P5_END"
    a("s_mov_b32 s17, 0")
    a("s_mov_b32 s16, 0")
    a("s_cmp_ge_u32 s2, 224")
    a(f"s_cbranch_scc1 {END if FUSED else 'P5_EXIT'}")
    a("s_lshr_b32 s27, s2, 3")
    a("s_mul_i32 s20, s27, 37")
    a("s_lshr_b32 s20, s20, 8")
    a("s_mul_i32 s21, s20, 7")
    a("s_sub_u32 s25, s27, s21")
    a("s_and_b32 s21, s2, 1")
    a("s_mul_i32 s21, s21, 7")
    a("s_add_u32 s25, s25, s21")
    a("s_bfe_u32 s26, s2, 0x20001")
    a("s_lshl_b32 s26, s26, 2")
    a("s_add_u32 s26, s26, s20")
    a(f"s_cmp_ge_u32 s{S_WAVE}, 8")
    a("s_cbranch_scc1 P5_LOADER")
    a(f"s_and_b32 s23, s{S_WAVE}, 1")
    a(f"s_lshr_b32 s24, s{S_WAVE}, 1")
    a("v_and_b32 v26, 15, v1")
    a("v_lshrrev_b32 v27, 4, v1")
    a("v_lshlrev_b32 v16, 9, v27")
    a("v_lshl_add_u32 v16, v26, 4, v16")
    a("s_lshl_b32 s20, s23, 13")
    a("v_add_u32 v16, s20, v16")
    a(f"v_add_u32 v17, {2*STG}, v16")
    a("v_bfe_u32 v28, v1, 2, 3")
    a("v_lshrrev_b32 v29, 5, v1")
    a("v_lshl_add_u32 v29, v29, 4, v28")
    a("v_lshlrev_b32 v18, 8, v29")
    a("s_lshl_b32 s20, s24, 1")
    a("v_xor_b32 v28, s20, v28")
    a("v_lshl_add_u32 v18, v28, 5, v18")
    a("v_and_b32 v28, 3, v1")
    a("v_lshl_add_u32 v18, v28, 3, v18")
    a(f"v_add_u32 v18, {A_SZ}, v18")
    a(f"v_add_u32 v19, {STG}, v18")
    a(f"v_add_u32 v20, {2*STG}, v18")
    for i in range(3): a(f"v_xor_b32 v{21+i}, 32, v{18+i}")
    for r in range(ACC, ACC + 64): a(f"v_mov_b32 v{r}, 0")
    a("v_lshlrev_b32 v24, 4, v26")
    a("s_lshl_b32 s20, s23, 10")
    a(f"s_add_u32 s20, s20, {TST}")
    a("v_add_u32 v24, s20, v24")
    a("v_lshlrev_b32 v25, 3, v26")
    a("s_lshl_b32 s20, s24, 8")
    a(f"s_add_u32 s20, s20, {TEX}")
    a("v_add_u32 v25, s20, v25")
    a("v_lshlrev_b32 v5, 9, v27")
    a("v_lshl_add_u32 v5, v26, 4, v5")
    a("s_lshl_b32 s4, s26, 2")
    a("s_lshl_b32 s5, s23, 1")
    a("s_add_u32 s4, s4, s5")
    a("s_mul_i32 s4, s4, 112*1024")
    a("s_lshl_b32 s5, s25, 13")
    a("s_add_u32 s4, s4, s5")
    a("s_lshl_b32 s5, s24, 11")
    a("s_add_u32 s4, s4, s5")
    a(f"s_add_u32 s4, s4, {WS_ACT}")
    a(f"s_add_u32 s5, s4, {112*1024}")
    def read_list(s):
        c, ks = divmod(s, 2)
        F = FR[s & 1]
        sl = c % NS
        va, oa = (16, sl * STG) if sl < 2 else (17, 0)
        A = [f"ds_read_b128 {r4(F+4*tt)}, v{va} offset:{oa + (tt>>1)*4096 + ks*2048 + (tt&1)*256}" for tt in range(4)]
        B = []
        for m in range(2):
            for fi in range(2):
                vb = (18 if fi == 0 else 21) + sl
                R = F + 16 + 8 * m + 4 * fi
                B.append(f"ds_read_b64_tr_b16 v[{R}:{R+1}], v{vb} offset:{m*16384 + ks*8192}")
                B.append(f"ds_read_b64_tr_b16 v[{R+2}:{R+3}], v{vb} offset:{m*16384 + ks*8192 + 2048}")
        return [A[0], B[0], B[1], A[1], A[2], A[3], B[2], B[3], B[4], B[5], B[6], B[7]]
    def mf_list(F):
        L = []
        need_w = {(0, 0): 3, (0, 1): 8, (1, 0): 10, (1, 1): 12}
        need_t = {0: 1, 1: 4, 2: 5, 3: 6}
        for m in range(2):
            for fi in range(2):
                for tt in range(4):
                    D = ACC + ((m * 2 + fi) * 4 + tt) * 4
                    L.append((f"v_mfma_f32_16x16x32_bf16 {r4(D)}, {r4(F+16+8*m+4*fi)}, {r4(F+4*tt)}, {r4(D)}", max(need_w[(m, fi)], need_t[tt])))
        return L
    a("s_barrier")
    stamp_mid(a, 1 if not FUSED else 6)
    if CYC == "p5": stamp_cyc(a, 10)
    for l in read_list(0): a(l)
    NR = 12
    E = FR[0]
    ext_reads = []
    for tt in range(4): ext_reads.append(f"ds_read_b128 {r4(E+4*tt)}, v24 offset:{tt*256}")
    for s in range(16):
        c, ks = divmod(s, 2)
        last = s == 15
        F = FR[s & 1]
        R = read_list(s + 1) if not last else ext_reads
        done = 0
        if ks == 1 and not last:
            a("s_waitcnt lgkmcnt(0)")
            a("s_barrier")
            done = NR
            if not FUSED: stamp_mid(a, 2 + c)
            if CYC == "p5s": stamp_mid(a, [0, 1, 2, 3, 4, 5, 10][c])
        ML = mf_list(F)
        issued = 0
        n = len(ML)
        for idx, (txt, need) in enumerate(ML):
            if need > done:
                a(f"s_waitcnt lgkmcnt({min(15, NR - need + issued)})")
                done = need
            a(txt)
            tgt = min(len(R), ((idx + 1) * len(R) * 4 + 3 * n - 1) // (3 * n))
            while issued < tgt:
                a(R[issued]); issued += 1
            if last and idx >= 4 and idx < 12:
                a(f"v_mov_b32 v{E+16+2*(idx-4)}, 0")
                a(f"v_mov_b32 v{E+17+2*(idx-4)}, 0")
    a("s_mov_b64 exec, 0xffff")
    for m in range(2):
        for fi in range(2):
            a(f"ds_read_b64 {r2(E+16+8*m+4*fi)}, v25 offset:{m*1024 + fi*128}")
    a("s_mov_b64 exec, -1")
    a("s_waitcnt lgkmcnt(4)")
    for tt in range(4):
        a(f"v_mov_b32 v{8+2*tt}, v{E+4*tt+2}")
        a(f"v_mov_b32 v{9+2*tt}, v{E+4*tt+3}")
        a(f"v_mov_b32 v{E+4*tt+2}, 0")
        a(f"v_mov_b32 v{E+4*tt+3}, 0")
    a("s_waitcnt lgkmcnt(0)")
    if CYC == "p5s": stamp_mid(a, 11)
    if FUSED: a("s_barrier")
    for txt, _ in mf_list(E): a(txt)
    stamp_mid(a, 9 if not FUSED else 7)
    if CYC == "p5": stamp_cyc(a, 11)
    T = FR[1]
    for tt in range(4):
        G = [ACC + (fi * 4 + tt) * 4 + r for fi in range(2) for r in range(4)]
        U = [g + 32 for g in G]
        Tt = T + (tt & 1) * 8
        Pk = T + 16 + tt * 4
        RG, CC = 8 + 2 * tt, 9 + 2 * tt
        for r in range(8): a(f"v_mul_f32 v{G[r]}, v{RG}, v{G[r]}")
        for r in range(8):
            a(f"v_exp_f32 v{Tt+r}, v{G[r]}")
            a(f"v_mul_f32 v{U[r]}, v{U[r]}, v{G[r]}")
        for r in range(8): a(f"v_fma_f32 v{Tt+r}, v{Tt+r}, v{CC}, v{CC}")
        for r in range(8): a(f"v_rcp_f32 v{Tt+r}, v{Tt+r}")
        for r in range(8): a(f"v_mul_f32 v{U[r]}, v{U[r]}, v{Tt+r}")
        for j in range(4): a(f"v_cvt_pk_bf16_f32 v{Pk+j}, v{U[2*j]}, v{U[2*j+1]}")
        a(f"buffer_store_dwordx4 {r4(Pk)}, v5, {sr(S_WS)}, s{4 + (tt>>1)} offen offset:{(tt&1)*256} {SC}")
    if FUSED:
        a("s_waitcnt vmcnt(0)")
        a("s_barrier")
    finish(a, 4, END, 96)
    c = a
    c.label("P5_LOADER")
    c("s_setprio 3")
    c(f"s_cmp_eq_u32 s{S_WAVE}, 8")
    c("s_cbranch_scc0 P5_LB")
    c("v_lshlrev_b32 v12, 4, v1")
    c("s_lshl_b32 s6, s26, 7")
    c(f"s_add_u32 s19, s6, {F4B}")
    c("s_mov_b32 s18, 0x0707")
    poll(c, 19, 16, 14, 7, need=18)
    c("s_lshl_b32 s4, s26, 17")
    c(f"s_add_u32 s4, s4, {WS_X1S}")
    c.vm = []
    def astage(st):
        sl = st % NS
        for i in range(16):
            t, k = i >> 2, i & 3
            c(f"s_mov_b32 m0, {sl*STG + i*1024}")
            c(f"s_add_u32 s6, s4, {t*32768 + st*4096 + k*1024}")
            c(f"buffer_load_dwordx4 v12, {sr(S_WS)}, s6 offen {SCL} lds", f"S{st}")
    astage(0); astage(1)
    c.wait_vm("S0")
    c("s_barrier")
    astage(2)
    poll_async(c, 19, 14, "pa")
    c("s_lshl_b32 s8, s26, 10")
    c(f"s_add_u32 s8, s8, {WS_ST2}")
    P = 32
    for st in range(1, 8):
        c.wait_vm(f"S{st}")
        c("s_barrier")
        if st == 1 and FUSED:
            c.wait_vm("pa")
            poll_finish(c, 19, 14)
            c.vm = []
        if st + 2 < 8: astage(st + 2)
        if st == 1:
            for p in range(16):
                c(f"s_add_u32 s9, s8, {p*16384}")
                c(f"buffer_load_dwordx4 {r4(P+4*p)}, v12, {sr(S_WS)}, s9 offen {SC}", "st")
        if st == 6:
            c.wait_vm("st")
            for w in (32, 16, 8, 4):
                for i in range(w): c(f"v_add_f32 v{P+i}, v{P+i}, v{P+i+w}")
            for hf in range(2):
                c(f"v_mul_f32 v{P+4+hf}, 0x3b000000, v{P+2*hf}")
                c(f"v_fma_f32 v{P+2*hf+1}, -v{P+2*hf}, v{P+4+hf}, v{P+2*hf+1}")
                c(f"v_max_f32 v{P+2*hf+1}, 0, v{P+2*hf+1}")
            ln_finish(c, [P + 4, P + 5], [P + 1, P + 3], [P + 8, P + 10])
            for hf in range(2):
                Q = P + 16 + 4 * hf
                c(f"v_xor_b32 v{P+4+hf}, 0x80000000, v{P+4+hf}")
                c(f"v_cvt_pk_bf16_f32 v{Q}, v{P+4+hf}, v{P+4+hf}")
                c(f"v_cvt_pk_bf16_f32 v{Q+1}, v{P+1+2*hf}, v{P+1+2*hf}")
                c(f"v_mul_f32 v{Q+2}, {hex(NLOG2E)}, v{P+8+2*hf}")
                c(f"v_mul_f32 v{Q+3}, {hex(NLOG2E)}, v{P+1+2*hf}")
            c("v_lshlrev_b32 v13, 5, v1")
            c(f"v_add_u32 v13, {TST}, v13")
            c(f"ds_write_b128 v13, {r4(P+16)}")
            c(f"ds_write_b128 v13, {r4(P+20)} offset:16")
            c("s_waitcnt lgkmcnt(0)")
    if FUSED:
        c("s_barrier")
        c("s_lshl_b32 s16, s26, 7")
        c("s_lshl_b32 s5, s25, 2")
        c("s_add_u32 s16, s16, s5")
        c(f"s_add_u32 s16, s16, {F5B}")
        c("s_mov_b32 s17, 1")
        c(f"s_branch {END}")
    else:
        c("s_endpgm")
    c.label("P5_LB")
    c.vm = []
    c("v_lshlrev_b32 v10, 4, v1")
    c("s_lshl_b32 s6, s25, 10")
    c(f"s_add_u32 s6, s6, {WS_EXT}")
    c(f"s_mov_b32 m0, {TEX}")
    c("s_add_u32 s7, s6, 14336")
    c(f"buffer_load_dwordx4 v10, {sr(S_WS)}, s6 offen {SCL} lds")
    c(f"s_mov_b32 m0, {TEX + 1024}")
    c("s_nop 0")
    c(f"buffer_load_dwordx4 v10, {sr(S_WS)}, s7 offen {SCL} lds")
    c("v_lshrrev_b32 v5, 4, v1")
    c("v_mul_u32_u24 v13, 3584, v5")
    c("v_bfe_u32 v14, v1, 1, 3")
    c("v_xor_b32 v14, v14, v5")
    c("v_lshl_add_u32 v13, v14, 5, v13")
    c("v_and_b32 v14, 1, v1")
    c("v_lshl_add_u32 v13, v14, 4, v13")
    c("v_xor_b32 v12, 128, v13")
    c("s_lshl_b32 s4, s25, 8")
    c(f"s_mov_b32 s5, {A_SZ}")
    def bstage():
        L = uid("P5B")
        c("s_mov_b32 s6, s4")
        c("s_mov_b32 s7, s5")
        c("s_mov_b32 s8, 4")
        c.label(L)
        for i in range(4):
            for m in range(2):
                c(f"s_add_u32 m0, s7, {m*16384 + i*1024}")
                if m == 0: c(f"s_add_u32 s9, s6, {i*4*3584}")
                else: c("s_nop 0")
                c(f"buffer_load_dwordx4 v{13 - (i & 1)}, {sr(S_WG if m == 0 else S_WU)}, s9 offen lds")
        c(f"s_add_u32 s6, s6, {16*3584}")
        c("s_add_u32 s7, s7, 4096")
        c("s_sub_u32 s8, s8, 1")
        c("s_cmp_lg_u32 s8, 0")
        c(f"s_cbranch_scc1 {L}")
        c(f"s_add_u32 s4, s4, {64*3584}")
        c(f"s_add_u32 s5, s5, {STG}")
        c(f"s_cmp_ge_u32 s5, {NS*STG}")
        c(f"s_cselect_b32 s5, {A_SZ}, s5")
    c("s_mov_b32 s10, 8")
    c.label("P5_LBL")
    bstage()
    c("s_sub_u32 s10, s10, 1")
    c(f"s_cmp_ge_u32 s10, {6 if FUSED else 7}")
    c("s_cbranch_scc1 P5_LBL")
    if FUSED:
        c("s_cmp_eq_u32 s10, 5")
        c("s_cbranch_scc0 P5_LBN")
        c("s_waitcnt vmcnt(32)")
        c("s_barrier")
        c.label("P5_LBN")
    c("s_waitcnt vmcnt(32)")
    c("s_barrier")
    c("s_cmp_lg_u32 s10, 0")
    c("s_cbranch_scc1 P5_LBL")
    c("s_waitcnt vmcnt(0)")
    c("v_lshlrev_b32 v9, 7, v1")
    if FUSED:
        c("s_lshl_b32 s6, s27, 15")
        c(f"s_add_u32 s6, s6, {896*1024}")
    else:
        c("s_lshl_b32 s6, s27, 16")
    for i in range(4 if FUSED else 8):
        c(f"s_add_u32 s7, s6, {i*8192}")
        c(f"buffer_load_dword v{16+i}, v9, {sr(S_WD)}, s7 offen")
    c("s_barrier")
    if FUSED:
        c("s_barrier")
        c("s_mov_b32 s17, 1")
    else:
        c.label("P5_EXIT")
        c("s_endpgm")
    c.label(END)

def p6(a):
    NA = int(os.environ.get("P6NA", "6")); NB = 20 - NA; NSTG = 28
    BB = NA * 8192
    END = "P6_END"
    tile64_ids(a)
    a(f"s_cmp_ge_u32 s{S_WAVE}, 4")
    a("s_cbranch_scc1 P6_LOADER")
    a(f"s_and_b32 s23, s{S_WAVE}, 1")
    a(f"s_lshr_b32 s24, s{S_WAVE}, 1")
    a("v_and_b32 v3, 31, v1")
    a("v_lshrrev_b32 v4, 5, v1")
    a("v_lshlrev_b32 v7, 10, v3")
    a("v_lshl_add_u32 v7, v4, 3, v7")
    a("v_lshlrev_b32 v5, 4, v1")
    a("v_lshlrev_b32 v6, 4, v4")
    a("s_lshl_b32 s4, s26, 16")
    a("s_lshl_b32 s5, s23, 15")
    a("s_add_u32 s4, s4, s5")
    a("s_lshl_b32 s5, s25, 12")
    a("s_add_u32 s6, s4, s5")
    a("s_lshl_b32 s5, s24, 11")
    a("s_add_u32 s6, s6, s5")
    a(f"s_add_u32 s6, s6, {WS_X1}")
    a("s_lshl_b32 s5, s25, 7")
    a("s_add_u32 s4, s4, s5")
    a("s_lshl_b32 s5, s24, 6")
    a("s_add_u32 s4, s4, s5")
    a("s_lshl_b32 s7, s25, 8")
    a("s_lshl_b32 s5, s24, 7")
    a("s_add_u32 s7, s7, s5")
    a(f"s_add_u32 s7, s7, {WS_MOD + 4*2560}")
    def eploads():
        a(f"buffer_load_dwordx4 v[64:67], v5, {sr(S_WS)}, s6 offen {SC}")
        a(f"buffer_load_dwordx4 v[68:71], v5, {sr(S_WS)}, s6 offen offset:1024 {SC}")
        for g in range(4):
            a(f"buffer_load_dwordx4 v[{72+4*g}:{75+4*g}], v6, {sr(S_WS)}, s7 offen offset:{g*32} {SC}")
    if FUSED: eploads()
    tile64_addrs(a, 16, 20, 24)
    a(f"v_add_u32 v20, {BB - 8192}, v20")
    a("v_add_u32 v21, 65536, v20")
    ACC = 32
    for r in range(ACC, ACC + 16): a(f"v_mov_b32 v{r}, 0")
    FS = [96, 128]
    def reads(c):
        L = []
        for ks in range(4):
            F = FS[c & 1] + 8 * ks
            sb = c % NB
            o1 = (sb % 8) * 8192 + (ks >> 1) * 4096 + (ks & 1) * 1024
            L.append(f"ds_read_b128 {r4(F)}, v16 offset:{(c % NA)*8192 + ks*1024}")
            L.append(f"ds_read_b64_tr_b16 v[{F+4}:{F+5}], v{20 + sb//8} offset:{o1}")
            L.append(f"ds_read_b64_tr_b16 v[{F+6}:{F+7}], v{20 + sb//8} offset:{o1 + 2048}")
        return L
    if FUSED: a("s_barrier")
    a("s_barrier")
    stamp_mid(a, 0 if not FUSED else 8)
    if CYC == "p6": stamp_cyc(a, 10)
    for l in reads(0): a(l)
    for c in range(NSTG):
        R = []
        if c + 1 < NSTG:
            a("s_barrier")
            if c + 1 == 20 and not FUSED: eploads()
            R = reads(c + 1)
        a("s_waitcnt lgkmcnt(0)")
        for ks in range(4):
            F = FS[c & 1] + 8 * ks
            a(f"v_mfma_f32_32x32x16_bf16 {r16(ACC)}, {r4(F+4)}, {r4(F)}, {r16(ACC)}")
            for l in R[6*ks:6*ks+6]: a(l)
    c = a
    stamp_mid(c, 1 if not FUSED else 9)
    if CYC == "p6": stamp_cyc(c, 11)
    c("s_waitcnt vmcnt(0)")
    for j in range(8):
        c(f"v_lshlrev_b32 v{88+2*j}, 16, v{64+j}")
        c(f"v_and_b32 v{89+2*j}, 0xffff0000, v{64+j}")
    for r in range(16): c(f"v_fma_f32 v{88+r}, v{72+r}, v{ACC+r}, v{88+r}")
    for j in range(8): c(f"v_cvt_pk_bf16_f32 v{48+j}, v{88+2*j}, v{89+2*j}")
    for g in range(4):
        c(f"buffer_store_dwordx2 v[{48+2*g}:{49+2*g}], v7, {sr(S_OUT)}, s4 offen offset:{g*16}")
    stamp_end(c, 5 if not FUSED else 1, S_WSP, 64)
    c("s_endpgm")
    c.label("P6_LOADER")
    c("s_setprio 3")
    c(f"s_cmp_ge_u32 s{S_WAVE}, 8")
    c("s_cbranch_scc1 P6_LB")
    def loader(tag, NS, n, srdtxt, step, stage_step, flags, isB):
        def stage():
            for i in range(n):
                c(f"s_add_u32 m0, s7, {i*1024}")
                c(f"s_add_u32 s9, s4, {i*step}")
                c(f"buffer_load_dwordx4 v10, {srdtxt}, s9 offen {flags} lds")
            c(f"s_add_u32 s4, s4, {stage_step}")
            c("s_add_u32 s7, s7, 8192")
            c("s_cmp_ge_u32 s7, s6")
            c("s_cselect_b32 s7, s5, s7")
        c("s_mov_b32 s7, s5")
        c(f"s_add_u32 s6, s5, {NS*8192}")
        c(f"s_mov_b32 s8, {NS}")
        if FUSED and not isB: c("s_barrier")
        c.label(f"P6_LPRE{tag}")
        stage()
        c("s_sub_u32 s8, s8, 1")
        c("s_cmp_lg_u32 s8, 0")
        c(f"s_cbranch_scc1 P6_LPRE{tag}")
        if FUSED and isB:
            c("s_cmp_eq_u32 s17, 0")
            c("s_cbranch_scc1 P6_LNE")
            c("s_barrier")
            c(f"s_cmp_eq_u32 s{S_WAVE}, 8")
            c("s_cbranch_scc0 P6_LNE")
            signal(c, 16, 4, 8)
            c.label("P6_LNE")
            c(f"s_cmp_eq_u32 s{S_WAVE}, 8")
            c("s_cbranch_scc0 P6_LNP")
            poll(c, 19, 14, 14, 9, need=18)
            c.label("P6_LNP")
            c("s_barrier")
        c(f"s_waitcnt vmcnt({min(60, n*(NS-1))})")
        c("s_barrier")
        if FUSED and isB:
            c(f"s_cmp_eq_u32 s{S_WAVE}, 8")
            c("s_cbranch_scc0 P6_LNQ")
            poll_async(c, 19, 14)
            c.label("P6_LNQ")
        c(f"s_waitcnt vmcnt({min(60, n*(NS-2))})")
        c("s_barrier")
        c(f"s_mov_b32 s8, {NSTG - NS}")
        c.label(f"P6_LMAIN{tag}")
        c(f"s_waitcnt vmcnt({min(60, n*(NS-3))})")
        if isB and FUSED:
            c(f"s_cmp_eq_u32 s8, {NSTG - NS - (8 - NA)}")
            c("s_cbranch_scc0 P6_LNB")
            c(f"s_cmp_eq_u32 s{S_WAVE}, 8")
            c("s_cbranch_scc0 P6_LNB")
            c(f"s_waitcnt vmcnt({n*(8-NA)})")
            poll_finish(c, 19, 14)
            c.label("P6_LNB")
        c("s_barrier")
        stage()
        c("s_sub_u32 s8, s8, 1")
        c("s_cmp_lg_u32 s8, 0")
        c(f"s_cbranch_scc1 P6_LMAIN{tag}")
        for k in range(NS - 2):
            c(f"s_waitcnt vmcnt({min(60, n*(NS-3-k))})")
            c("s_barrier")
    c("v_lshlrev_b32 v10, 4, v1")
    c(f"s_sub_u32 s10, s{S_WAVE}, 4")
    c("s_lshl_b32 s5, s10, 11")
    c("s_lshl_b32 s4, s26, 1")
    c("s_lshr_b32 s11, s10, 1")
    c("s_add_u32 s4, s4, s11")
    c("s_mul_i32 s4, s4, 112*1024")
    c("s_and_b32 s11, s10, 1")
    c("s_lshl_b32 s11, s11, 11")
    c("s_add_u32 s4, s4, s11")
    c(f"s_add_u32 s4, s4, {WS_ACT}")
    loader("A", NA, 2, sr(S_WS), 1024, 4096, SCL, False)
    c("s_endpgm")
    c.label("P6_LB")
    bload64_addr(c, 10)
    c("s_lshr_b32 s6, s26, 1")
    c("s_lshl_b32 s6, s6, 7")
    c(f"s_add_u32 s19, s6, {F5B}")
    c("s_mov_b32 s18, 0x000f")
    c("v_mov_b32 v14, 0")
    c(f"s_sub_u32 s10, s{S_WAVE}, 8")
    c("s_lshl_b32 s5, s10, 12")
    c(f"s_add_u32 s5, s5, {BB}")
    c("s_lshl_b32 s4, s25, 7")
    c("s_lshl_b32 s11, s10, 15")
    c("s_add_u32 s4, s4, s11")
    loader("B", NB, 4, sr(S_WD), 8192, 65536, "", True)
    if FUSED and STAMP:
        c(f"s_cmp_eq_u32 s{S_WAVE}, 8")
        c(f"s_cbranch_scc0 {END}")
        stamp_end(c, 2, S_WSP, 16)
    c.label(END)
    c("s_endpgm")
```
